```python
import torch

def _softmax(x, axis=-1):
    return torch.softmax(x, dim=axis)

def _gelu(x):
    return torch.nn.functional.gelu(x, approximate='tanh')

def _silu(x):
    return torch.nn.functional.silu(x)

def _sigmoid(x):
    return torch.sigmoid(x)

def _layernorm(x, axis=-1, eps=1e-05):
    m = x.mean(dim=axis, keepdim=True)
    v = x.var(dim=axis, keepdim=True, unbiased=False)
    return (x - m) / torch.sqrt(v + eps)

def _scatter_add(tgt, idx, src, axis=0):
    return tgt.clone().index_add_(axis, idx, src)

def _segment_sum(src, seg, n):
    out = torch.zeros((n,) + src.shape[1:], dtype=src.dtype)
    return out.index_add_(0, seg, src)

def _pad(x, pw):
    flat = tuple((v for pair in reversed(pw) for v in pair))
    return torch.nn.functional.pad(x, flat)
kernel_name = 'gated_mix__memory_aug_recurrent_mem_tr__ssm_conv_h3__prompt'

def setup_inputs():

    _w = lambda a: (lambda t: t.to(torch.bfloat16) if t.is_floating_point() else t)(torch.as_tensor(a))

    def _A_setup():
        B, S, Dm = (1, 2048, 512)
        H, Dh = (32, 128)
        M, seg = (8, 32)
        seg = min(seg, S)
        S = S // seg * seg
        return {'x': _w((lambda *s: torch.randn(*s, dtype=torch.bfloat16) * 0.05)(B, S, Dm)), 'mem0': _w((lambda *s: torch.randn(*s, dtype=torch.bfloat16) * 0.4)(B, M, Dm)), 'Wq': _w((lambda *s: torch.randn(*s, dtype=torch.bfloat16) * 6.4)(Dm, H, Dh) * Dm ** (-0.5)), 'Wk': _w((lambda *s: torch.randn(*s, dtype=torch.bfloat16) * 6.4)(Dm, H, Dh) * Dm ** (-0.5)), 'Wv': _w((lambda *s: torch.randn(*s, dtype=torch.bfloat16) * 0.4)(Dm, H, Dh) * Dm ** (-0.5)), 'Wo': _w((lambda *s: torch.randn(*s, dtype=torch.bfloat16) * 0.4)(H, Dh, Dm) * (H * Dh) ** (-0.5)), 'seg_len': seg}
    _A_in = _A_setup()

    def _B_setup():
        B, S, D = (1, 2048, 512)
        ks = 4
        return {'q': _w((lambda *s: torch.randn(*s, dtype=torch.bfloat16) * 0.05)(B, S, D)), 'k': _w((lambda *s: torch.randn(*s, dtype=torch.bfloat16) * 0.4)(B, S, D)), 'v': _w((lambda *s: torch.randn(*s, dtype=torch.bfloat16) * 0.4)(B, S, D)), 'shift_k': _w((lambda *s: torch.randn(*s, dtype=torch.bfloat16) * 0.4)(D, ks) * 0.5), 'ssm_k': _w((lambda *s: torch.randn(*s, dtype=torch.bfloat16) * 0.4)(D, S) * (1.0 / S ** 0.5)), 'ssm_D': _w((lambda *s: torch.randn(*s, dtype=torch.bfloat16) * 0.4)(D))}
    _B_in = _B_setup()
    return {'A_x': _A_in['x'], 'A_mem0': _A_in['mem0'], 'A_Wq': _A_in['Wq'], 'A_Wk': _A_in['Wk'], 'A_Wv': _A_in['Wv'], 'A_Wo': _A_in['Wo'], 'A_seg_len': _A_in['seg_len'], 'B_q': _B_in['q'], 'B_k': _B_in['k'], 'B_v': _B_in['v'], 'B_shift_k': _B_in['shift_k'], 'B_ssm_k': _B_in['ssm_k'], 'B_ssm_D': _B_in['ssm_D'], 'gate_w': _w((lambda *s: torch.randn(*s, dtype=torch.bfloat16) * 0.05)(512) * 16.0)}

def reference(A_x, A_mem0, A_Wq, A_Wk, A_Wv, A_Wo, A_seg_len, B_q, B_k, B_v, B_shift_k, B_ssm_k, B_ssm_D, gate_w):

    def _A_ref(x, mem0, Wq, Wk, Wv, Wo, seg_len):
        B, S, Dm = x.shape
        H, Dh = (Wq.shape[1], Wq.shape[2])
        M = mem0.shape[1]
        scale = Dh ** (-0.5)
        n_seg = S // seg_len
        L = M + seg_len
        idx = torch.arange(L)
        mask = (idx[:, None] < M) | (idx[:, None] >= idx[None, :])
        mem = mem0
        outs = []
        for s in range(n_seg):
            xs = x[:, s * seg_len:(s + 1) * seg_len, :].clone()
            h = torch.concatenate([mem, xs], axis=1)
            q = torch.einsum('btd,dhe->bhte', h, Wq)
            k = torch.einsum('btd,dhe->bhte', h, Wk)
            v = torch.einsum('btd,dhe->bhte', h, Wv)
            scores = torch.einsum('bhqe,bhke->bhqk', q, k) * scale
            scores = torch.where(mask[None, None], scores, -1000000000.0)
            p = _softmax(scores, axis=-1)
            o = torch.einsum('bhqk,bhke->bhqe', p, v)
            o = torch.einsum('bhte,hed->btd', o, Wo)
            mem = o[:, :M, :].clone()
            outs.append(o[:, M:, :])
        return torch.concatenate(outs, axis=1)

    def _B_ref(q, k, v, shift_k, ssm_k, ssm_D):
        B, S, D = q.shape
        ks = shift_k.shape[-1]
        k_pad = _pad(k, ((0, 0), (ks - 1, 0), (0, 0)))
        k_shift = torch.zeros_like(k)
        for t in range(ks):
            k_shift = k_shift + k_pad[:, t:t + S, :] * shift_k[:, ks - 1 - t][None, None, :]
        kv = k_shift * v
        L = 2 * S
        kv_pad = _pad(kv, ((0, 0), (0, S), (0, 0)))
        kf_pad = _pad(ssm_k, ((0, 0), (0, S)))
        kv_f = (lambda x, axes=(-2, -1): torch.fft.rfft2(x.float(), dim=axes))(kv_pad[:, None, :, :], axes=(1, 2))
        kf_f = (lambda x, axes=(-2, -1): torch.fft.rfft2(x.float(), dim=axes))(kf_pad[:, None, :], axes=(1, 2))
        kf_f = (lambda x, *d: x.permute(*d))(kf_f, 1, 2, 0)
        y_f = kv_f * kf_f[None, :, :, :]
        y = (lambda x, s, axes=(-2, -1): torch.fft.irfft2(x, s=s, dim=axes).to(torch.bfloat16))(y_f, (1, L), axes=(1, 2))[:, 0, :S, :]
        y = y + kv * ssm_D[None, None, :]
        return q * y
    x = A_x
    g = _sigmoid((x * gate_w).sum(-1, keepdims=True))
    a = _A_ref(x, A_mem0, A_Wq, A_Wk, A_Wv, A_Wo, A_seg_len)
    b = _B_ref(x, B_k, B_v, B_shift_k, B_ssm_k, B_ssm_D)
    return g * a + (1 - g) * b
```

```python
import re

REG = re.compile(r'(?<![\w.])([vas])(\d+)(?![\w\[])|(?<![\w.])([vas])\[(\d+):(\d+)\]')

def regs_of(tok):
    out = []
    for m in REG.finditer(tok):
        if m.group(1):
            out.append((m.group(1), int(m.group(2))))
        else:
            out += [(m.group(3), i) for i in range(int(m.group(4)), int(m.group(5)) + 1)]
    for sp in ('vcc', 'exec', 'm0'):
        if re.search(r'(?<![\w])' + sp + r'(_lo|_hi)?(?![\w])', tok):
            out.append((sp, 0))
    return out

def split_ops(s):
    ops, depth, cur = [], 0, ''
    for ch in s:
        if ch in '[(':
            depth += 1
        if ch in '])':
            depth -= 1
        if ch == ',' and depth == 0:
            ops.append(cur.strip()); cur = ''
        else:
            cur += ch
    if cur.strip():
        ops.append(cur.strip())
    return ops

TRANS = ('v_exp_f32', 'v_log_f32', 'v_rcp_f32', 'v_rsq_f32', 'v_sqrt_f32', 'v_sin_f32', 'v_cos_f32', 'v_rcp_iflag_f32')

class I:
    def __init__(self, text):
        self.text = text
        t = text.split(';')[0].strip()
        self.label = t.endswith(':')
        self.op = t.split()[0] if t else ''
        rest = t[len(self.op):].strip()
        ops = split_ops(rest)
        self.ops = ops
        op = self.op
        self.kind = 'other'
        self.dst, self.src = [], []
        self.srcA = self.srcB = self.srcC = []
        self.passes = 0
        self.data = []
        if self.label or not op or op.startswith('.'):
            self.kind = 'meta'; return
        R = [regs_of(o) for o in ops]
        if op.startswith('v_mfma') or op.startswith('v_smfmac'):
            self.kind = 'mfma'
            self.dst = R[0]; self.srcA = R[1]; self.srcB = R[2]
            if op.startswith('v_smfmac'):
                self.srcC = R[0]; self.srcA = R[1] + R[3]
            else:
                self.srcC = R[3]
            self.src = self.srcA + self.srcB + self.srcC
            self.passes = 8 if '32x32' in op else 4
            self.hold = 12 if op.startswith('v_smfmac') else (4 if ('16x16x16' in op or '32x32x8' in op) else 8)
        elif op.startswith('v_'):
            self.kind = 'valu'
            if op.startswith('v_cmp'):
                self.dst = R[0]; self.src = sum(R[1:], [])
                if op.startswith('v_cmpx'): self.dst = self.dst + [('exec', 0)]
            elif op.startswith('v_permlane') and 'swap' in op:
                self.dst = R[0] + R[1]; self.src = R[0] + R[1]
            elif op.startswith(('v_add_co', 'v_addc_co', 'v_sub_co', 'v_subb_co', 'v_mad_u64', 'v_div_scale')):
                self.dst = R[0] + R[1]; self.src = sum(R[2:], [])
            else:
                self.dst = R[0]; self.src = sum(R[1:], [])
                if op.startswith(('v_fmac', 'v_pk_fmac', 'v_writelane', 'v_dot2c')) or 'dpp' in op or 'quad_perm' in t or 'row_' in t or 'sdwa' in op or 'op_sel' in t and op.startswith('v_cvt'):
                    self.src = self.src + R[0]
            self.dpp = ('dpp' in op) or ('quad_perm' in t) or ('row_' in t)
            self.trans = op.replace('_e32', '').replace('_e64', '').replace('_dpp', '') in TRANS
        elif op.startswith('ds_'):
            self.kind = 'ds'
            if op.startswith(('ds_read', 'ds_bpermute', 'ds_permute', 'ds_swizzle')):
                self.dst = R[0]; self.src = sum(R[1:], [])
            else:
                self.src = sum(R, []); self.data = sum(R[1:], [])
        elif op.startswith(('buffer_', 'global_')):
            self.kind = 'vmem'
            islds = bool(re.search(r'\blds\b', t)) or '_lds_' in op
            self.islds = islds
            if 'load' in op:
                if islds:
                    self.src = sum(R, []) + [('m0', 0)]
                else:
                    self.dst = R[0]; self.src = sum(R[1:], [])
            elif 'atomic' in op:
                self.src = sum(R, [])
                if op.startswith('buffer_'):
                    self.data = R[0]
                    if ' sc0' in t: self.dst = R[0][:1] if 'cmpswap' in op and 'x2' not in op else R[0]
                else:
                    if ' sc0' in t: self.dst = R[0]
            elif 'store' in op:
                self.src = sum(R, [])
                self.data = R[0] if op.startswith('buffer_') else R[1]
            self.wide = ('x3' in op or 'x4' in op) and 'store' in op
        elif op.startswith(('s_load', 's_buffer_load', 's_memtime', 's_memrealtime', 's_atomic')):
            self.kind = 'smem'; self.dst = R[0]; self.src = sum(R[1:], [])
        elif op.startswith('s_'):
            self.kind = 'salu'
            if op.startswith(('s_cmp', 's_bitcmp', 's_cbranch', 's_branch', 's_waitcnt', 's_nop', 's_barrier', 's_endpgm', 's_sleep', 's_setprio', 's_setreg')):
                self.src = sum(R, [])
                if 'vcc' in op: self.src.append(('vcc', 0))
                if 'exec' in op: self.src.append(('exec', 0))
            else:
                self.dst = R[0] if R else []; self.src = sum(R[1:], [])
                if 'saveexec' in op: self.dst = self.dst + [('exec', 0)]

    def cost(self):
        if self.op == 's_nop': return 4 * (int(self.ops[0], 0) + 1)
        return 4

class Asm:
    def __init__(self):
        self.lines = []
        self.hist = []
        self.t = 0
        self.last_mfma_t = None
        self.last_mfma_len = 0
        self.lgkm = []
        self.vm = []
        self.nid = 0
        self.auto_wait = True
        self.nops_inserted = 0
        self.smem_pending = False

    def raw(self, s):
        self.lines.append(s)

    def comment(self, s):
        self.lines.append('    ; ' + s)

    def label(self, name, flush=True):
        if flush:
            self.flush()
        self.lines.append(name + ':')

    def _dist(self, i, c):
        t = 0; lm = None; prev = None
        for ins in self.hist[i:]:
            if prev is not None:
                t += prev.cost()
                if lm is not None:
                    if ins.kind == 'mfma': t = max(t, lm[0] + 4 * lm[1].passes)
                    elif ins.kind == 'valu': t = max(t, lm[0] + lm[1].hold)
            if ins.kind == 'mfma': lm = (t, ins)
            prev = ins
        slot = t + prev.cost()
        nat = slot
        if lm is not None and c is not None:
            if c.kind == 'mfma': nat = max(nat, lm[0] + 4 * lm[1].passes)
            elif c.kind == 'valu': nat = max(nat, lm[0] + lm[1].hold)
        return slot, nat

    def flush(self):
        need = 0
        for i, ins in enumerate(self.hist):
            w = -1
            if ins.kind == 'mfma': w = {4: 8, 8: 12}[ins.passes]
            elif ins.kind == 'valu':
                w = 2
                if any(r[0] in ('s', 'vcc', 'exec') for r in ins.dst): w = 5
            elif ins.kind == 'vmem' and getattr(ins, 'wide', False): w = 2
            elif ins.kind == 'ds' and len(ins.data) >= 3: w = 2
            elif ins.kind == 'salu' and (('m0', 0) in ins.dst or ('exec', 0) in ins.dst): w = 1
            if w >= 0:
                slot, _ = self._dist(i, None)
                need = max(need, 4 * (w + 1) - slot)
        self._pad(need)
        self.hist = []

    def forget(self):
        self.hist = []

    def _pad(self, cycles):
        n = (cycles + 3) // 4
        while n > 0:
            k = min(n, 16)
            self.lines.append(f'    s_nop {k-1}')
            self.hist.append(I(f's_nop {k-1}'))
            self.t += 4 * k; n -= k
            self.nops_inserted += k

    def _required(self, c):
        need = 0
        cs, cd = set(c.src), set(c.dst)
        for pi, p in enumerate(self.hist):
            pd = set(p.dst)
            w = -1
            if p.kind == 'mfma':
                big = {4: 8, 8: 12}[p.passes]
                if c.kind == 'mfma':
                    if pd & (set(c.srcA) | set(c.srcB)): w = max(w, big)
                    if pd & set(c.srcC):
                        if p.dst == c.srcC and p.op == c.op: w = max(w, 0)
                        else: w = max(w, {4: 6, 8: 10}[p.passes])
                    elif pd & cd: w = max(w, {4: 6, 8: 10}[p.passes])
                elif c.kind in ('valu', 'ds', 'vmem'):
                    if pd & (cs | cd): w = max(w, big)
                    if c.kind == 'valu' and set(p.srcC) & cd: w = max(w, {4: 3, 8: 7}[p.passes])
            elif p.kind == 'valu':
                vd = {r for r in pd if r[0] in 'va' and len(r[0]) == 1}
                sd = {r for r in pd if r[0] in ('s', 'vcc')}
                if c.kind == 'mfma':
                    if vd & cs: w = max(w, 2)
                    if ('exec', 0) in pd: w = max(w, 4)
                if c.kind == 'valu':
                    if (c.dpp or c.op.startswith('v_permlane')) and vd & cs: w = max(w, 2)
                    if c.op.startswith(('v_readlane', 'v_readfirstlane')) and vd & cs: w = max(w, 1)
                    if p.trans and not c.trans and vd & cs: w = max(w, 1)
                    if p.trans and c.trans and vd & cs: w = max(w, 1)
                    implicit_vcc = c.op.startswith(('v_cndmask', 'v_addc', 'v_subb', 'v_div_fmas'))
                    if sd & cs: w = max(w, 4 if c.op.startswith(('v_readlane', 'v_writelane', 'v_div_fmas')) else 2)
                    if ('exec', 0) in pd: w = max(w, 5)
                    if 'op_sel' in p.text or 'sdwa' in p.op:
                        if vd & (cs | cd): w = max(w, 1)
                if c.kind == 'vmem' and sd & cs: w = max(w, 5)
                if c.kind == 'smem' and sd & cs: w = max(w, 5)
                if c.kind == 'ds' and p.trans and vd & cs: w = max(w, 1)
                if c.kind == 'vmem' and p.trans and vd & cs: w = max(w, 1)
            elif p.kind == 'vmem':
                if getattr(p, 'wide', False) and set(p.data) & cd: w = max(w, 2)
            elif p.kind == 'ds':
                if p.data and len(p.data) >= 3 and set(p.data) & cd and c.kind in ('valu', 'mfma'): w = max(w, 2)
            elif p.kind == 'salu':
                if ('m0', 0) in pd and ('m0', 0) in cs and c.kind in ('vmem', 'ds'): w = max(w, 1)
                if ('exec', 0) in pd and c.kind == 'valu' and (c.dpp or c.op.startswith('v_permlane')): w = max(w, 1)
            if w > 0:
                slot, nat = self._dist(pi, c)
                if nat < 4 * (w + 1):
                    need = max(need, 4 * (w + 1) - slot)
        return need

    def _waits(self, c):
        touched = set(c.src) | set(c.dst)
        for q, name in ((self.lgkm, 'lgkmcnt'), (self.vm, 'vmcnt')):
            idx = -1
            for i, (oid, d) in enumerate(q):
                if d & touched: idx = i
            if idx >= 0 and not (c.kind == 'ds' and name == 'lgkmcnt' and not (set(c.src) & q[idx][1]) and False):
                self._emit_wait(name, len(q) - 1 - idx)

    def _emit_wait(self, name, n):
        q = self.lgkm if name == 'lgkmcnt' else self.vm
        mx = 15 if name == 'lgkmcnt' else 63
        if name == 'lgkmcnt' and self.smem_pending: n = 0
        n = min(n, mx)
        self.lines.append(f'    s_waitcnt {name}({n})')
        self.hist.append(I('s_waitcnt x'))
        self.t += 4
        del q[:max(0, len(q) - n)]
        if name == 'lgkmcnt' and n == 0: self.smem_pending = False

    def wait_op(self, oid):
        for q, name in ((self.lgkm, 'lgkmcnt'), (self.vm, 'vmcnt')):
            for i, (o, d) in enumerate(q):
                if o == oid:
                    self._emit_wait(name, len(q) - 1 - i); return

    def wait_lgkm(self, n=0):
        self._emit_wait('lgkmcnt', n)

    def wait_vm(self, n=0):
        self._emit_wait('vmcnt', n)

    def assume_vm(self, entries):
        self.vm = [(self._id(), set(e)) for e in entries]

    def assume_lgkm(self, entries):
        self.lgkm = [(self._id(), set(e)) for e in entries]

    def _id(self):
        self.nid += 1; return self.nid

    def __call__(self, text):
        oid = None
        for line in text.strip().split('\n'):
            line = line.strip()
            if not line: continue
            oid = self.one(line)
        return oid

    def one(self, text):
        c = I(text)
        if c.kind == 'meta':
            if c.label: self.label(text.split(':')[0].strip())
            else: self.lines.append('    ' + text)
            return None
        if c.op == 's_waitcnt':
            m = re.search(r'vmcnt\((\d+)\)', text)
            if m:
                n = int(m.group(1)); del self.vm[:max(0, len(self.vm) - n)]
            m = re.search(r'lgkmcnt\((\d+)\)', text)
            if m:
                n = int(m.group(1)); del self.lgkm[:max(0, len(self.lgkm) - n)]
                if n == 0: self.smem_pending = False
            self.lines.append('    ' + text); self.t += 4
            self.hist.append(c)
            return None
        if self.auto_wait:
            self._waits(c)
        def natural():
            t = self.t
            if self.last_mfma_t is not None:
                if c.kind == 'mfma': t = max(t, self.last_mfma_t + self.last_mfma_len)
                elif c.kind == 'valu': t = max(t, self.last_mfma_t + self.last_mfma_hold)
            return t
        need = self._required(c)
        if need > 0:
            self._pad(need)
        t = natural()
        if c.op.startswith(('s_cbranch', 's_branch')) and not getattr(c, 'noflush', False):
            pass
        self.lines.append('    ' + text)
        self.hist.append(c)
        self.hist = self.hist[-16:]
        self.t = t + c.cost()
        if c.kind == 'mfma':
            self.last_mfma_t = t; self.last_mfma_len = 4 * c.passes; self.last_mfma_hold = c.hold
        oid = None
        if c.kind == 'ds':
            oid = self._id(); self.lgkm.append((oid, set(c.dst)))
        elif c.kind == 'vmem':
            oid = self._id(); self.vm.append((oid, set(c.dst)))
        elif c.kind == 'smem':
            oid = self._id(); self.lgkm.append((oid, set(c.dst))); self.smem_pending = True
        return oid

    def text(self):
        return '\n'.join(self.lines) + '\n'

def vr(base, n=1, k='v'):
    return f'{k}{base}' if n == 1 else f'{k}[{base}:{base+n-1}]'

class Reg:
    def __init__(self, kind, base, n):
        self.k, self.b, self.n = kind, base, n
    def __str__(self): return vr(self.b, self.n, self.k)
    def __getitem__(self, i):
        if isinstance(i, slice):
            a = i.start or 0; e = self.n if i.stop is None else i.stop
            assert 0 <= a < e <= self.n
            return Reg(self.k, self.b + a, e - a)
        assert 0 <= i < self.n
        return Reg(self.k, self.b + i, 1)
    def set(self): return {(self.k, self.b + i) for i in range(self.n)}

class Pool:
    def __init__(self, kind, lo, hi):
        self.k = kind; self.free = set(range(lo, hi)); self.names = {}
    def alloc(self, n, name='', align=None):
        al = align or (1 if n == 1 else 2)
        for b in sorted(self.free):
            if b % al == 0 and all(b + i in self.free for i in range(n)):
                for i in range(n): self.free.discard(b + i)
                r = Reg(self.k, b, n); self.names[name] = r
                return r
        raise RuntimeError(f'out of {self.k} regs for {name} ({n}); free={sorted(self.free)}')
    def release(self, r):
        for i in range(r.n):
            assert r.b + i not in self.free
            self.free.add(r.b + i)
```

```python
from asmlib import *
from layout import *
from sched import Sched
import struct
def f32bits(x): return struct.unpack('<I', struct.pack('<f', x))[0]

L_M, L_SM, L_O, L_SX, L_PX, L_ZERO, L_SEL, L_MISC = 0x0000, 0x1000, 0x1400, 0x2000, 0x3000, 0x3200, 0x3400, 0x3800
L_SLOT0, L_RING = 0x4000, 0x8000
OS = 288
NSTEPS = 63
DPPX = 'quad_perm:[2,3,0,1] row_mask:0xf bank_mask:0xf'
DPPB = 'quad_perm:[0,1,0,1] row_mask:0xf bank_mask:0xf'

S_WS = 's[8:11]'
S_W  = 's[12:15]'
S_DBG = 's[16:19]'
sH = 's20'
sW = 's21'
sTO = 's22'
sHB = 's[24:25]'
sHB0 = 's[26:27]'
sTag, sPAr, sMl, sRe, sMn, sMH, sKV, sHint, sBlk, sFL, sStep, sC, sT0, sT1, sT2, sNeed = ['s%d' % i for i in range(28, 44)]
sLlo, sLrange = 's44', 's45'
sStamp = 's[46:47]'; sSt0 = 's48'


sOnes = 's[70:71]'


class Chain:
    def __init__(self, a, opts):
        self.a = a; self.o = opts

    def plan(self, w):
        P = Pool('v', 0, 144)
        R = {}
        def al(name, n, align=None): R[name] = P.alloc(n, name, align); return R[name]
        al('m', 32); al('stg', 24); al('q', 8); al('k', 8); al('v', 8); al('kx', 8); al('vx', 8); al('vxn', 8)
        al('tc', 2)
        al('tA', 4); al('tB', 4); al('tC', 4); al('tD', 4); al('qo', 4)
        for n in ('idx', 'l16', 'b1', 'b2', 'pst', 'mst', 'pxw', 'plo', 'phi', 'ow', 'orr', 'hst', 'flag', 'pf', 'sxr', 'x0', 'x1', 'x2'):
            al(n, 1)
        self.R = R; self.P = P
        self.loc = None
        order = self.region(w, '', 'X', dry=True)
        fed_pos = self.o.get('fed_pos', [9, 11, 13, 15, 18, 20, 23, 25, 28, 30, 33, 36, 39, 42, 45, 48, 53, 58])
        assert len(fed_pos) == 18
        fed = [order[i] for i in fed_pos]
        assert sum(s[0] == 'o' for s in fed) >= 2
        self.fed = fed
        ldord = lambda s: ((0, s[2], s[1]) if s[0] == 'o' else ('vkq'.index(s[0]) + 1, s[2], s[1]))
        self.lpos = {fed.index(s): i for i, s in enumerate(sorted(fed, key=ldord))}
        loc = {}
        for n, s in enumerate(fed): loc[s] = ('lds', n)
        va, aa = 144, 0
        for s in order:
            if s in loc: continue
            if s[0] == 'o': loc[s] = ('reg', Reg('v', va, 8)); va += 8
        for s in order:
            if s in loc: continue
            if aa < 256: loc[s] = ('reg', Reg('a', aa, 8)); aa += 8
            else: loc[s] = ('reg', Reg('v', va, 8)); va += 8
        assert va <= 256 and aa <= 256, (va, aa)
        self.loc = loc; self.order = order

    def lds_slot_addr(self, n, w, half):
        ad = L_SLOT0 + self.lpos[n] * 8192 + w * 2048 + half * 1024
        return (self.R[('l16', 'b1', 'b2')[ad >> 16]], ad & 0xFFFF)

    def refill_texts(self, n, w):
        out = []
        for hf in range(2):
            base, off = self.lds_slot_addr(n, w, hf)
            out.append(f"ds_read_b128 {self.R['stg'][8*(n%3)+4*hf:8*(n%3)+4*hf+4]}, {base} offset:{off}")
        return out

    def loader(self, w):
        a = self.a; loc = self.loc
        P = Pool('v', 1, 144)
        vj, vg, ga0, ga1, gl, rt0, rt1, ro, wl = [P.alloc(1) for _ in range(9)]
        X = P.alloc(4)
        a(f'''
        v_and_b32 {wl}, 63, v0
        v_and_b32 {vj}, 15, v0
        v_lshrrev_b32 {vg}, 4, {wl}
        v_lshlrev_b32 {gl}, 4, {wl}
        v_lshlrev_b32 {ga0}, 1, {vg}
        v_xor_b32 {ga0}, {ga0}, {vj}
        v_xor_b32 {ga1}, 8, {ga0}
        v_lshlrev_b32 {ga0}, 4, {ga0}
        v_lshlrev_b32 {ga1}, 4, {ga1}
        v_lshl_add_u32 {ga0}, {vg}, 13, {ga0}
        v_lshl_add_u32 {ga1}, {vg}, 13, {ga1}
        ''')
        a(f'''
        v_lshrrev_b32 {X[0]}, 2, {vj}
        v_and_b32 {X[1]}, 1, {vg}
        v_lshl_or_b32 {X[1]}, {X[1]}, 2, {X[0]}
        v_lshl_add_u32 {X[0]}, {vg}, 3, {X[0]}
        v_lshlrev_b32 {X[0]}, 8, {X[0]}
        v_and_b32 {X[2]}, 3, {vj}
        v_lshl_add_u32 {X[0]}, {X[2]}, 3, {X[0]}
        v_xor_b32 {rt0}, {2*w}, {X[1]}
        v_xor_b32 {rt1}, {2*w+1}, {X[1]}
        v_lshl_add_u32 {rt0}, {rt0}, 5, {X[0]}
        v_lshl_add_u32 {rt1}, {rt1}, 5, {X[0]}
        v_add_u32 {rt0}, {L_RING}, {rt0}
        v_add_u32 {rt1}, {L_RING}, {rt1}
        ''')
        a(f'''
        v_lshrrev_b32 {X[0]}, 1, {vg}
        v_lshlrev_b32 {X[0]}, 14, {X[0]}
        v_and_b32 {X[1]}, 1, {vg}
        v_lshl_add_u32 {X[0]}, {X[1]}, 12, {X[0]}
        v_lshl_add_u32 {ro}, {vj}, 3, {X[0]}
        v_add_u32 {ro}, {L_RING + 256*w}, {ro}
        s_mov_b32 {sT1}, 0x05040100
        s_mov_b32 {sT2}, 0x07060302
        ''')
        chunks = [('o', c) for c in range(4)] + [(m, c) for m in 'vkq' for c in range(4)]
        ka = {'q': KA_WQ, 'k': KA_WK, 'v': KA_WV, 'o': KA_WO}
        sptr = {'q': 60, 'k': 62, 'v': 64, 'o': 66}
        for m in 'qkvo': a(f's_load_dwordx2 s[{sptr[m]}:{sptr[m]+1}], s[0:1], {ka[m]}')
        a('s_waitcnt lgkmcnt(0)')
        def issue(ci):
            m, c = chunks[ci]
            a(f'''s_mov_b32 s12, s{sptr[m]}
            s_mov_b32 s13, s{sptr[m]+1}
            s_mov_b32 s14, 0x400000
            s_mov_b32 s15, 0x20000''')
            if m == 'o':
                a(f's_lshl_b32 {sT0}, {sH}, 17\n s_add_u32 {sT0}, {sT0}, {(32*c + 8*w)*1024}')
            else:
                a(f's_lshl_b32 {sT0}, {sH}, 8\n s_add_u32 {sT0}, {sT0}, {(128*c + 32*w)*8192}')
            for i in range(8):
                n = 8 * w + i
                a(f's_mov_b32 m0, {L_RING + (ci & 3)*32768 + n*1024}')
                ad = gl if m == 'o' else (ga0, ga1)[(n >> 1) & 1]
                a(f'buffer_load_dwordx4 {ad}, {S_W}, {sT0} offen lds')
                if i < 7: a(f's_add_u32 {sT0}, {sT0}, {1024 if m == "o" else 32768}')
        parked = {}
        done_half = {}
        ready = []
        def dest(s):
            if loc[s][0] == 'reg': return loc[s][1]
            if s not in parked: parked[s] = P.alloc(8)
            return parked[s]
        wb = P.alloc(1)
        def writeout(cond):
            for s in list(ready):
                n = self.lpos[loc[s][1]]
                if cond(n):
                    ad = L_SLOT0 + n * 8192 + w * 2048
                    a(f'v_add_u32 {wb}, {ad}, {gl}')
                    a(f'ds_write_b128 {wb}, {parked[s][0:4]}')
                    a(f'ds_write_b128 {wb}, {parked[s][4:8]} offset:1024')
                    ready.remove(s); P.release(parked[s]);
        freed = set([0, 1])
        for ci in range(4): issue(ci)
        for ci, (m, c) in enumerate(chunks):
            infl = min(3, 15 - ci)
            a(f's_waitcnt vmcnt({8*infl})')
            a('s_barrier')
            rb = (ci & 3) * 32768
            if m == 'o':
                if ci & 3: a(f'v_add_u32 {ro}, 32768, {ro}')
                ko, hi = c >> 1, c & 1
                for ph in range(2):
                    for pbl in range(4):
                        off = (8 * (pbl & 1) + 2 * (pbl >> 1)) * 1024 + 128 * ph
                        a(f'ds_read_b64 {X[0:2]}, {ro} offset:{off}')
                        a(f'ds_read_b64 {X[2:4]}, {ro} offset:{off+1024}')
                        for tp in range(4):
                            d = dest(('o', 4 * ph + tp, ko))
                            assert d.k == 'v'
                            a(f'v_perm_b32 {d[4*hi+pbl]}, {X[2+(tp>>1)]}, {X[tp>>1]}, {(sT1, sT2)[tp&1]}')
                if hi:
                    ready.extend(s for s in [('o', t, ko) for t in range(8)] if loc[s][0] == 'lds')
            else:
                if ci > 4:
                    d_ = 32768 if (ci & 3) else -3 * 32768
                    a(f'v_add_u32 {rt0}, {d_ & 0xffffffff}, {rt0}\n v_add_u32 {rt1}, {d_ & 0xffffffff}, {rt1}')
                for kl in range(2):
                    for t in range(2):
                        s = (m, t, 2 * c + kl); d = dest(s)
                        for u in range(2):
                            for v in range(2):
                                off = (64 * kl + 32 * u + 4 * v) * 256
                                a(f'ds_read_b64_tr_b16 {d[4*u+2*v:4*u+2*v+2]}, {(rt0, rt1)[t]} offset:{off}')
                        if loc[s][0] == 'lds': ready.append(s)
            a('s_waitcnt lgkmcnt(0)')
            a('s_barrier')
            if ci + 4 < 16: issue(ci + 4)
            else: freed |= {2 + 4 * (ci & 3) + i for i in range(4)}
            writeout(lambda n: n in freed)
        assert not ready, ready
        a('s_waitcnt lgkmcnt(0)')


    def init_buffers(self, w):
        a = self.a
        phi, b = w >> 1, w & 1
        nofl = self.o.get('test_kv')
        a(f"""
        v_and_b32 v1, 63, v0
        v_lshlrev_b32 v2, 4, v1
        v_mov_b64 v[4:5], -1
        v_mov_b64 v[6:7], -1
        v_mov_b64 v[8:9], 0
        v_mov_b64 v[10:11], 0
        s_lshl_b32 {sT0}, {sH}, 13
        s_add_u32 {sT0}, {sT0}, {WS_PA + b*4096 + phi*2048}
        buffer_store_dwordx4 v[8:11], v2, {S_WS}, {sT0} offen sc1
        buffer_store_dwordx4 v[8:11], v2, {S_WS}, {sT0} offen offset:1024 sc1
        s_lshl_b32 {sHint}, {sH}, 2
        s_add_u32 {sHint}, {sHint}, {WS_HINT}
        s_lshl_b32 {sT0}, {sH}, 21
        s_add_u32 {sT0}, {sT0}, {WS_STEP + O_M + (w >> 1)*STEP + (w & 1)*10240}
        """)
        if w == 0: a(f'buffer_store_dword v8, off, {S_WS}, {sHint} sc1')
        for i in range(10):
            if nofl and (w & 1) and i >= 6: continue
            a(f'buffer_store_dwordx4 v[4:7], v2, {S_WS}, {sT0} offen offset:{(i&3)*1024} sc1')
            if i & 3 == 3: a(f's_add_u32 {sT0}, {sT0}, 4096')

    def setup(self, w):
        a = self.a; R = self.R
        phi, b = w >> 1, w & 1
        j, g, c2, hb, tau = R['tA'][0], R['tA'][1], R['tA'][2], R['tA'][3], R['qo'][0]
        t1, t2, t3 = R['qo'][1], R['qo'][2], R['qo'][3]
        ln = R['x0']; mout = R['tB'][2]
        a(f"""
        s_lshl_b32 {sBlk}, {sH}, 7
        s_add_u32 {sBlk}, {sBlk}, {phi*4096 + b*64}
        v_mbcnt_lo_u32_b32 {ln}, -1, 0
        v_mbcnt_hi_u32_b32 {ln}, -1, {ln}
        v_and_b32 {j}, 15, {ln}
        v_lshrrev_b32 {g}, 4, {ln}
        v_lshrrev_b32 {c2}, 2, {j}
        v_bfe_u32 {hb}, {j}, 1, 1
        v_and_b32 {t1}, 1, {j}
        v_lshl_add_u32 {tau}, {c2}, 1, {t1}
        s_mov_b32 s24, 0xcccccccc
        s_mov_b32 s25, 0xcccccccc
        s_mov_b32 s26, 0x33333333
        s_mov_b32 s27, 0x33333333
        s_mov_b32 s70, 0x3f803f80
        s_mov_b32 s71, 0x3f803f80
        v_lshlrev_b32 {R['l16']}, 4, {ln}
        v_add_u32 {R['b1']}, 0x10000, {R['l16']}
        v_add_u32 {R['b2']}, 0x20000, {R['l16']}
        v_mov_b32 {R['idx']}, 0x4444
        v_mov_b32 {t2}, 0xeeee
        v_cndmask_b32 {R['idx']}, {R['idx']}, {t2}, {sHB}
        v_lshlrev_b32 {t1}, 4, {t1}
        v_mov_b32 {t2}, 0x3f80
        v_lshlrev_b32 {t2}, {t1}, {t2}
        v_cmp_eq_u32 vcc, {g}, {c2}
        v_cndmask_b32 {t1}, 0, {t2}, vcc
        v_cndmask_b32 {R['tc'][0]}, {t1}, 0, {sHB}
        v_cndmask_b32 {R['tc'][1]}, 0, {t1}, {sHB}
        """)
        S = R['tC']
        a(f'v_cndmask_b32 {t2}, {t2}, 0, {sHB}')
        for n in range(4):
            a(f'v_cmp_eq_u32 vcc, {n}, {c2}\n v_cndmask_b32 {S[n]}, 0, {t2}, vcc')
        a(f"ds_write_b128 {R['l16']}, {S} offset:{L_SEL}")
        Z = R['tD']
        for n in range(4): a(f'v_mov_b32 {Z[n]}, 0')
        a(f'v_mov_b32 {t1}, {L_ZERO}\n ds_write_b128 {t1}, {Z}')
        a(f"""
        v_lshlrev_b32 {t1}, 14, {c2}
        v_lshl_add_u32 {t1}, {g}, 12, {t1}
        v_and_b32 {t2}, 3, {j}
        v_lshl_add_u32 {t1}, {t2}, 4, {t1}
        s_lshl_b32 {sT0}, {sH}, 6
        s_add_u32 {sT0}, {sT0}, {WS_PA + w*65536}
        v_add_u32 {R['pst']}, {sT0}, {t1}
        """)
        a(f"""
        v_and_b32 {t1}, 1, {g}
        v_lshrrev_b32 {t3}, 1, {g}
        v_lshlrev_b32 {R['x1']}, 10, {t3}
        v_lshl_add_u32 {R['x1']}, {t2}, 3, {R['x1']}
        v_lshl_add_u32 {R['x1']}, {t1}, 2, {R['x1']}
        v_lshlrev_b32 {t1}, 5, {t1}
        v_lshl_add_u32 {t1}, {t2}, 2, {t1}
        v_lshl_add_u32 {t1}, {t3}, 4, {t1}
        v_add_u32 {t1}, {sBlk}, {t1}
        v_mov_b32 {t2}, 0x40000000
        v_cmp_gt_u32 vcc, 4, {j}
        v_cndmask_b32 {R['mst']}, {t2}, {t1}, vcc
        s_lshl_b32 {sT0}, {sH}, 8
        v_add_u32 {t1}, {sT0}, {R['l16']}
        v_cmp_gt_u32 vcc, 16, {ln}
        v_cndmask_b32 {R['hst']}, {t2}, {t1}, vcc
        s_load_dwordx2 s[72:73], s[0:1], {KA_MEM0}
        s_lshr_b32 {sT0}, {sH}, 3
        s_lshl_b32 {sT0}, {sT0}, 8
        s_bfe_u32 {sT1}, {sH}, 0x20001
        s_lshl_b32 {sT1}, {sT1}, 5
        s_add_u32 {sT0}, {sT0}, {sT1}
        s_and_b32 {sT1}, {sH}, 1
        s_lshl_b32 {sT1}, {sT1}, 12
        s_add_u32 {sT0}, {sT0}, {sT1}
        s_add_u32 {sT0}, {sT0}, {phi*128 + b*2048}
        v_add_u32 {R['x1']}, {sT0}, {R['x1']}
        s_waitcnt lgkmcnt(0)
        global_load_dword {mout}, {R['x1']}, s[72:73]
        """)
        a(f"""
        v_lshrrev_b32 {t3}, 3, {ln}
        v_add_u32 {t3}, {w}, {t3}
        v_and_b32 {t3}, 3, {t3}
        v_lshl_add_u32 {R['sxr']}, {t3}, 2, {R['l16']}
        v_lshl_add_u32 {t1}, {tau}, 2, {g}
        v_lshlrev_b32 {t1}, 4, {t1}
        v_add_u32 {t1}, {L_PX}, {t1}
        v_lshl_add_u32 {R['pxw']}, {hb}, 3, {t1}
        v_lshl_add_u32 {R['pxw']}, {t3}, 1, {R['pxw']}
        v_mov_b32 {t2}, {L_ZERO}
        v_cndmask_b32 {R['plo']}, {t1}, {t2}, {sHB}
        v_cndmask_b32 {R['phi']}, {t2}, {t1}, {sHB}
        v_mul_u32_u24 {t1}, {OS}, {tau}
        v_lshl_add_u32 {t2}, {hb}, 5, {t1}
        v_lshl_add_u32 {R['ow']}, {g}, 3, {t2}
        v_lshl_add_u32 {t2}, {hb}, 4, {t1}
        v_lshl_add_u32 {R['orr']}, {g}, 5, {t2}
        """)
        a(f"""
        s_lshl_b32 {sKV}, {sH}, 14
        s_add_u32 {sKV}, {sKV}, {O_KV + w*4096}
        s_lshl_b32 {sPAr}, {sH}, 13
        s_add_u32 {sPAr}, {sPAr}, {WS_PA + b*4096 + phi*2048}
        s_lshl_b32 {sFL}, {sH}, 6
        s_add_u32 {sFL}, {sFL}, {O_FKV}
        v_lshlrev_b32 {t2}, 7, {ln}
        s_add_u32 {sT0}, {sBlk}, {O_M + STEP}
        s_sub_u32 {sT0}, {sT0}, {sKV}
        v_mov_b32 {t3}, {sT0}
        v_cmp_gt_u32 vcc, 16, {ln}
        v_cndmask_b32 {t2}, {t3}, {t2}, vcc
        s_add_u32 {sT0}, {sFL}, {STEP}
        s_sub_u32 {sT0}, {sT0}, {sKV}
        v_mov_b32 {t3}, {sT0}
        v_cmp_gt_u32 vcc, 17, {ln}
        v_cndmask_b32 {t2}, {t3}, {t2}, vcc
        v_mov_b32 {t3}, 0x40000000
        v_cmp_gt_u32 vcc, {18 if w == 3 else 17}, {ln}
        v_cndmask_b32 {R['pf']}, {t3}, {t2}, vcc
        s_add_u32 {sKV}, {sKV}, {WS_STEP}
        s_add_u32 {sFL}, {sFL}, {WS_STEP}
        s_mov_b32 {sMl}, {WS_STEP + O_M + w*2048}
        s_mov_b32 {sMn}, {WS_STEP + O_M}
        s_mov_b32 {sMH}, {WS_STEP + O_MH}
        s_mov_b32 {sTag}, 0
        s_mov_b32 {sStep}, 0
        s_mov_b32 {sC}, {f32bits(CSCALE)}
        s_mov_b32 {sLlo}, {(127-40) << 23}
        s_mov_b32 {sLrange}, {80 << 23}
        s_mov_b32 m0, {L_M + w*2048}
        s_waitcnt vmcnt(0) lgkmcnt(0)
        """)
        if w < 2:
            a(f"v_lshlrev_b32 {t1}, 2, {ln}\n v_mov_b32 {t2}, 0x40000000\n v_cmp_gt_u32 vcc, {(1, 32)[w]}, {ln}\n v_cndmask_b32 {R['hst']}, {t2}, {t1}, vcc")
        if w == 1: a(f's_mov_b32 {sHint}, {WS_HINT}')

    def retry(self):
        self.a(f's_sub_u32 {sTO}, {sTO}, 1\n s_cbranch_scc1 L_exit')

    def wait_flag(self, tag):
        a = self.a; R = self.R
        a.label(f'{tag}_spin')
        a(f"buffer_load_dword {R['flag']}, off, {S_WS}, {sFL} sc1")
        self.retry()
        a(f"s_waitcnt vmcnt(0)\n v_readfirstlane_b32 {sT1}, {R['flag']}\n s_cmp_eq_u32 {sT1}, -1\n s_cbranch_scc1 {tag}_spin")

    def stamp(self, name):
        if self.o.get('stamps') != 3: return
        act = self.o.get('st', ['bA', 'bB', 'L', 'b2', 'b3', 'b4', 'P0', 'P1', 'Pok', 'M'])
        if name not in act: return
        i = act.index(name)
        self.a.raw(f'    s_memtime s[{80+2*i}:{81+2*i}]')
        self.nst = len(act)

    def trace(self, w):
        if self.o.get('stamps') != 3: return
        a = self.a; x1 = self.R['x1']; x0 = self.R['x0']
        a('s_memrealtime s[100:101]\n s_waitcnt lgkmcnt(0)')
        for i in range(self.nst): a(f'v_writelane_b32 {x1}, s{80+2*i}, {i}')
        a(f'v_writelane_b32 {x1}, s100, 15\n v_writelane_b32 {x1}, s75, 14')
        a(f's_lshl_b32 s49, {sH}, 2\n s_add_u32 s49, s49, {w}\n s_lshl_b32 s49, s49, 6\n s_add_u32 s49, s49, {sStep}\n s_lshl_b32 s49, s49, 6\n s_add_u32 s49, s49, {WS_DUMP}')
        a(f"v_lshrrev_b32 {x0}, 2, {self.R['l16']}")
        a('s_mov_b64 exec, 0xffff')
        a(f'buffer_store_dword {x1}, {x0}, {S_WS}, s49 offen')
        a('s_mov_b64 exec, -1')

    def region(self, w, sc, tag, dry=False):
        a = self.a; R = self.R; loc = self.loc; o = self.o
        late = w >= 2
        m = lambda k: R['m'][4*k:4*k+4]
        l16 = R['l16']
        x0, x1, x2 = R['x0'], R['x1'], R['x2']
        q, k_, v_ = R['q'], R['k'], R['v']
        tA, tB, tC, tD, qo = [R[n] for n in ('tA', 'tB', 'tC', 'tD', 'qo')]
        tE = tA; ones = qo
        S = Sched()
        A = S.add
        OA = [tA, tB]
        lastm = {}
        def smf_node(s, aft=[]):
            mat, t, k = s
            fedn = None
            if loc is None: B = 'a[0:7]'
            elif loc[s][0] == 'reg': B = loc[s][1]
            else: fedn = loc[s][1]; B = R['stg'][8*(fedn%3):8*(fedn%3)+8]
            if mat == 'o': D, Aop = R['m'][4*t:4*t+4], OA[k]
            else: D, Aop = R[mat][4*t:4*t+4], m(k)
            key = mat if (loc is None or not o.get('chainall', 1)) else 'all'
            n = A(f"v_smfmac_f32_16x16x64_bf16 {D}, {Aop}, {B}, {R['idx']}", after=([(lastm.get(key), 16)] if lastm.get(key) else []) + aft, name=s)
            lastm[key] = n
            if fedn is not None and fedn + 3 < 18:
                for tx in self.refill_texts(fedn + 3, w): A(tx)
            return n
        def halfadd(acc, t):
            return [f'v_add_f32 {acc[4*t]}, {acc[4*t]}, {acc[4*t+2]}', f'v_add_f32 {acc[4*t+1]}, {acc[4*t+1]}, {acc[4*t+3]}']
        TL = o.get('TL', 300)
        ids = {}
        vmn = [0]
        vmat = {}
        def bar(name, after, waitfor, pre=None):
            def em():
                if pre: pre()
                for n in waitfor:
                    if ids.get(id(n)) is not None: a.wait_op(ids[id(n)])
                a('s_barrier'); self.stamp(name)
            return A('s_barrier', after=list(after) + list(waitfor), emit=em)
        KS = [(2 * w + i) & 7 for i in range(8)]
        rdtx = lambda k: f'ds_read_b128 {m(k)}, {l16} offset:{L_M + fpos(k)*1024}'
        def chk(ks):
            if o.get('light') and sc == '': regs = [m(k)[0] for k in ks]
            else: regs = [m(k)[i] for k in ks for i in range(4)]
            out = [f'v_max3_u32 {x2}, {regs[0]}, {regs[1]}, {regs[2]}']
            regs = regs[3:]
            while len(regs) >= 2:
                out.append(f'v_max3_u32 {x2}, {x2}, {regs[0]}, {regs[1]}'); regs = regs[2:]
            out.append(f'v_max_u32 {x2}, {x2}, {regs[0]}')
            out.append(f'v_cmp_eq_u32 vcc, -1, {x2}')
            return out
        for k in KS: A(rdtx(k))
        for tx in chk(KS): A(tx)
        def emE():
            a(f's_cbranch_vccnz {tag}_retryE'); self.stamp('L')
            if o.get('stamps') == 3: self.trace(w); a.vm = []; vmn[0] += 1
        nE = A(f's_cbranch_vccnz {tag}_retryE', emit=emE)
        nL = nE; bB = nE
        allp = [(mat, t, k) for mat in 'qkv' for k in KS for t in range(2)]
        if loc is not None: allp = [s for s in self.order if s[0] != 'o']
        for s in allp: smf_node(s, [nE] if loc is not None and loc[s][0] == 'lds' else [])
        kvgate = nE if o.get('kvearly', 1) else nL
        for i in range(2): A(f"buffer_load_dwordx4 {R['vxn'][4*i:4*i+4]}, {l16}, {S_WS}, {sKV} offen offset:{2048+1024*i} sc1", after=[kvgate], bias=o.get('bias_pf', 1500))
        A(f"buffer_load_dword {R['flag']}, {R['pf']}, {S_WS}, {sKV} offen sc1", after=[kvgate], bias=o.get('bias_pf', 1500) - 50)
        hr = None
        if w == 2:
            hr = A(f"ds_read_b128 {tC}, {R['hst']} offset:{L_M}", after=[nL])
            A(f"buffer_store_dwordx4 {tC}, {R['hst']}, {S_WS}, {sMH} offen sc1", bias=o.get('bias_hist', 1200)).cost = 20
        for tx in halfadd(q, 0) + halfadd(q, 1): A(tx, after=[nE])
        A(f'v_cvt_pk_bf16_f32 {q[0]}, {q[0]}, {q[1]}')
        A(f'v_cvt_pk_bf16_f32 {q[1]}, {q[4]}, {q[5]}')
        A(f"v_mfma_f32_16x16x16_bf16 {q[4:8]}, {q[0:2]}, {R['tc']}, 0")
        A(f'v_cvt_pk_bf16_f32 {qo[0]}, {q[4]}, {q[5]}')
        A(f'v_cvt_pk_bf16_f32 {qo[1]}, {q[6]}, {q[7]}')
        A(f'v_mov_b32_dpp {qo[2]}, {qo[0]} {DPPX}')
        A(f'v_mov_b32_dpp {qo[3]}, {qo[1]} {DPPX}')
        A(f"v_mfma_f32_16x16x32_bf16 {tA}, {R['kx'][0:4]}, {qo}, 0")
        A(f"v_mfma_f32_16x16x32_bf16 {tB}, {R['kx'][4:8]}, {qo}, 0")
        for i in range(2): A(f"buffer_load_dwordx4 {R['kx'][4*i:4*i+4]}, {l16}, {S_WS}, {sKV} offen offset:{1024*i} sc1", bias=o.get('bias_kv', 700))
        for i in range(4): A(f'v_cndmask_b32 {tA[i]}, {tA[i]}, {tB[i]}, {sHB}')
        wS = A(f'ds_write_b128 {l16}, {tA} offset:{L_SX + w*1024}')
        b2 = bar('b2', [bB], [wS] + ([hr] if hr else []), pre=lambda: a(f's_waitcnt vmcnt({vmn[0]})'))
        A(f"ds_read2st64_b32 {tB[0:2]}, {R['sxr']} offset0:{L_SX//256} offset1:{L_SX//256+4}", after=[b2])
        A(f"ds_read2st64_b32 {tB[2:4]}, {R['sxr']} offset0:{L_SX//256+8} offset1:{L_SX//256+12}", after=[b2])
        A(f'v_add_f32 {tB[0]}, {tB[0]}, {tB[1]}'); A(f'v_add_f32 {tB[2]}, {tB[2]}, {tB[3]}'); A(f'v_add_f32 {x0}, {tB[0]}, {tB[2]}')
        A(f'v_exp_f32 {x0}, {x0}')
        A(f'v_cvt_pk_bf16_f32 {x0}, {x0}, {x0}')
        wP = A(f"ds_write_b16 {R['pxw']}, {x0}")
        for tx in halfadd(k_, 0) + halfadd(k_, 1): A(tx)
        A(f'v_cvt_pk_bf16_f32 {k_[0]}, {k_[0]}, {k_[1]}')
        A(f'v_cvt_pk_bf16_f32 {k_[1]}, {k_[4]}, {k_[5]}')
        A(f"v_mfma_f32_16x16x16_bf16 {k_[4:8]}, {k_[0:2]}, {R['tc']}, 0")
        A(f'v_cvt_pk_bf16_f32 {k_[0]}, {k_[4]}, {k_[5]}')
        A(f'v_cvt_pk_bf16_f32 {k_[1]}, {k_[6]}, {k_[7]}')
        A(f'v_mfma_f32_16x16x16_bf16 {k_[4:8]}, {k_[0:2]}, {qo[0:2]}, 0')
        A(f'v_mov_b64 {ones[0:2]}, {sOnes}'); A(f'v_mov_b64 {ones[2:4]}, {sOnes}')
        A(f'v_cndmask_b32 {k_[2]}, {k_[5]}, {k_[6]}, {sHB}')
        A(f'v_cndmask_b32 {k_[3]}, {k_[4]}, {k_[7]}, {sHB}')
        A(f'v_add_f32_dpp {k_[3]}, {k_[2]}, {k_[3]} {DPPX}')
        wM = A(f'ds_write_b32 {l16}, {k_[3]} offset:{L_SM + 4*w}', after=[b2])
        hp = []
        if o.get('hint', 1) and w == 0:
            A(f'v_mov_b32 {x2}, {sNeed}', after=[nL])
        b3 = bar('b3', [b2], [wP, wM])
        if o.get('hint', 1) and w == 0:
            A(f"buffer_store_dword {x2}, {R['hst']}, {S_WS}, {sHint} offen {sc}", after=[(b3, o.get('hpost', 90))], bias=2000)
        A(f'ds_read_b128 {tE}, {l16} offset:{L_SM}', after=[b3])
        A(f"ds_read_b128 {tB}, {R['plo']}", after=[b3])
        A(f"ds_read_b128 {tC}, {R['phi']}", after=[b3])
        HS = o.get('hs', [70, 130])
        hnodes = []
        if o.get('hint', 1):
            if w == 1:
                for i, tt in enumerate(HS):
                    hnodes.append(A(f'buffer_load_dword {k_[i]}, {R["hst"]}, {S_WS}, {sHint} offen sc1', after=[(b3, tt)], bias=2000))
        Oacc, Lacc, tF, oc = tD, q[0:4], q[4:6], q[6:8]
        vp = v_[0:2]
        for tx in halfadd(v_, 0) + halfadd(v_, 1): A(tx)
        A(f'v_cvt_pk_bf16_f32 {v_[0]}, {v_[0]}, {v_[1]}')
        A(f'v_cvt_pk_bf16_f32 {v_[1]}, {v_[5]}, {v_[4]}')
        A(f'v_add_f32 {tE[0]}, {tE[0]}, {tE[1]}'); A(f'v_add_f32 {tE[2]}, {tE[2]}, {tE[3]}'); A(f'v_add_f32 {tE[0]}, {tE[0]}, {tE[2]}')
        A(f'v_mul_f32 {tE[0]}, {sC}, {tE[0]}')
        A(f'v_exp_f32 {tE[1]}, {tE[0]}')
        A(f'v_mov_b32_dpp {tE[2]}, {tE[1]} {DPPX}')
        A(f'v_cvt_pk_bf16_f32 {tE[1]}, {tE[1]}, {tE[2]}')
        A(f'v_cndmask_b32 {tF[0]}, {tE[1]}, 0, {sHB}')
        A(f'v_cndmask_b32 {tF[1]}, 0, {tE[1]}, {sHB}')
        A(f"v_mfma_f32_16x16x32_bf16 {Lacc}, {ones}, {tB}, 0")
        A(f"v_mfma_f32_16x16x32_bf16 {Oacc}, {R['vx'][0:4]}, {tB}, 0")
        A(f"v_mfma_f32_16x16x32_bf16 {Oacc}, {R['vx'][4:8]}, {tC}, {Oacc}")
        A(f"v_mfma_f32_16x16x16_bf16 {Lacc}, {ones[0:2]}, {tF}, {Lacc}")
        A(f'v_mfma_f32_16x16x16_bf16 {Oacc}, {vp}, {tF}, {Oacc}')
        A(f'v_rcp_f32_dpp {x0}, {Lacc[0]} {DPPB}')
        A(f'v_subrev_u32 {x1}, {sLlo}, {Lacc[0]}')
        A(f'v_cmp_le_u32 vcc, {sLrange}, {x1}')
        nt = [f'v_mul_f32 {Oacc[i]}, {Oacc[i]}, {x0}' for i in range(4)] + [f'v_cvt_pk_bf16_f32 {oc[0]}, {Oacc[0]}, {Oacc[1]}', f'v_cvt_pk_bf16_f32 {oc[1]}, {Oacc[2]}, {Oacc[3]}',
              f"ds_write_b64 {R['ow']}, {oc} offset:{L_O + 64*w}", f's_and_b64 vcc, vcc, {sHB0}', f's_cbranch_scc1 {tag}_fallback']
        def emN():
            a.label(f'{tag}_norm', flush=False)
            for tx in nt[:6]: a(tx)
            ids[id(nN)] = a(nt[6]); a(nt[7]); a(nt[8])
        nN = A(nt, emit=emN)
        for p_, l_ in list(nN.preds):
            if p_.last.op.startswith('v_cmp_le'):
                nN.preds.remove((p_, l_)); nN.preds.append((p_, 4)); p_.succs.remove((nN, l_)); p_.succs.append((nN, 4))
        nN.src |= R['vx'].set() | vp.set() | tE.set() | ones.set(); nN.dst |= tB.set() | tC.set()
        for i in range(0, 32, 2): A(f"v_mov_b64 {R['m'][i:i+2]}, 0", after=[nE])
        def hcheck():
            if not hnodes: return
            self.hwait = [vmn[0] - vmat[id(h_)] for h_ in hnodes]
            a(f's_waitcnt vmcnt({self.hwait[0]})')
            a(f'v_cmp_gt_u32 vcc, {sNeed}, {k_[0]}\n s_cmp_lg_u32 vcc_lo, 0\n s_cbranch_scc1 {tag}_hint')
            a.label(f'{tag}_hintok', flush=False)
        b4 = bar('b4', [b3, (nN, nN.cost + 30)] + hnodes, [nN], pre=hcheck)
        A(f"ds_read_b128 {tA}, {R['orr']} offset:{L_O}", after=[b4])
        A(f"ds_read_b128 {tB}, {R['orr']} offset:{L_O+128}", after=[b4])
        for t in range(8):
            smf_node(('o', t, 0)); smf_node(('o', t, 1))
        M_ = R['m']
        for ph, dst in ((0, tC), (1, tD)):
            b0 = 16 * ph
            for t in range(4*ph, 4*ph+4):
                for tx in halfadd(M_, t): A(tx)
            A(f'v_cvt_pk_bf16_f32 {dst[0]}, {M_[b0]}, {M_[b0+4]}'); A(f'v_cvt_pk_bf16_f32 {dst[2]}, {M_[b0+1]}, {M_[b0+5]}')
            A(f'v_and_or_b32 {dst[0]}, {dst[0]}, -2, {sTag}')
            A(f'v_cvt_pk_bf16_f32 {dst[1]}, {M_[b0+8]}, {M_[b0+12]}'); A(f'v_cvt_pk_bf16_f32 {dst[3]}, {M_[b0+9]}, {M_[b0+13]}')
            tx = f"buffer_store_dwordx4 {dst}, {R['pst']}, {S_WS}, 0 offen offset:{2048*ph} {sc}"
            if ph == 0: A(tx, bias=o.get('bias_p0', 200), emit=(lambda tx=tx: (a(tx), self.stamp('P0'))))
            else:
                self.p1 = tx
                A(tx, emit=lambda: None)
        order = S.run(tol=o.get('tol', 8), mfirst=o.get('mfirst', 4), verbose=(o.get('verbose') == w and not dry and sc == ''))
        if dry: return [n.name for n in order if n.name]
        assert order[-1].texts[0] == self.p1
        if o.get('verbose') is not None and sc == '': print('wave', w, 'makespan', S.makespan)
        pos = 0
        for n in order:
            if n.emit: n.emit()
            else:
                for tx in n.texts: ids[id(n)] = a(tx)
            if n.last.kind == 'vmem':
                a.vm = []; vmn[0] += 1; vmat[id(n)] = vmn[0]
            if n.name: pos += 1; self.stamp(f'p{pos}')
        self.fb = (Oacc, Lacc, tF, vp, len(hnodes))

    def loop(self, w, sc, tag):
        a = self.a; R = self.R; o = self.o
        m = lambda k: R['m'][4*k:4*k+4]
        l16 = R['l16']
        x0, x1, x2 = R['x0'], R['x1'], R['x2']
        q, k_, v_ = R['q'], R['k'], R['v']
        tA, tB, tC, tD, qo = [R[n] for n in ('tA', 'tB', 'tC', 'tD', 'qo')]
        tE = tA; ones = qo; mout = tB[2]
        late = w >= 2
        def zero(mats):
            for mat in mats:
                for i in range(0, 8, 2): a(f'v_mov_b64 {R[mat][i:i+2]}, 0')
        def delay(n):
            while n >= 4:
                k = min(n, 64) // 4; a(f's_nop {k-1}'); n -= 4 * k
        def dma():
            a(f'buffer_load_dwordx4 {l16}, {S_WS}, {sMl} offen sc1 lds')
            a(f'buffer_load_dwordx4 {l16}, {S_WS}, {sMl} offen offset:1024 sc1 lds')
        self.wait_flag(f'{tag}_pf0')
        for i in range(2): a(f"buffer_load_dwordx4 {R['kx'][4*i:4*i+4]}, {l16}, {S_WS}, {sKV} offen offset:{1024*i} sc1")
        for i in range(2): a(f"buffer_load_dwordx4 {R['vxn'][4*i:4*i+4]}, {l16}, {S_WS}, {sKV} offen offset:{2048+1024*i} sc1")
        a(f"buffer_load_dword {R['flag']}, {R['pf']}, {S_WS}, {sKV} offen sc1")
        a(f's_add_u32 {sKV}, {sKV}, {STEP}\n s_add_u32 {sFL}, {sFL}, {STEP}\n s_mov_b32 {sRe}, 1\n s_mov_b32 {sNeed}, 1')
        for n in range(3):
            for tx in self.refill_texts(n, w): a(tx)
        zero('qkv')
        a('s_waitcnt vmcnt(0) lgkmcnt(0)')
        if o.get('stamps'):
            a(f's_memtime {sStamp}\n s_waitcnt lgkmcnt(0)\n s_mov_b32 {sSt0}, s46')
        a(f's_branch {tag}_Mst')
        a.label(f'{tag}_step')
        a.lgkm = []; a.vm = []
        for i in range(0, 8, 2): a(f"v_mov_b64 {R['vx'][i:i+2]}, {R['vxn'][i:i+2]}")
        if w == 3:
            a(f"v_readlane_b32 {sT1}, {R['flag']}, 17\n s_cmp_eq_u32 {sT1}, -1\n s_cbranch_scc1 {tag}_slowflag")
            a.label(f'{tag}_flagok', flush=False)
        if o.get('mbar', 1): a('s_barrier')
        self.stamp('bB')
        delay(o.get('dM', 60))
        nM = o.get('nM', 1)
        for i in range(nM):
            if i: delay(o.get('gM', 64))
            dma()
        a(f's_waitcnt vmcnt({2*(nM-1)})')
        a('s_barrier')
        self.stamp('bA')
        a.label(f'{tag}_bA', flush=False)
        a.vm = []
        self.region(w, sc, tag)
        Oacc, Lacc, tF, vp, nh = self.fb
        pd = R['m'][0:8]
        idle = [f'ds_read_b128 {qo}, {l16} offset:{L_SEL}']
        for n in range(3): idle += self.refill_texts(n, w)
        for mat in 'qkv':
            for i in range(0, 8, 2): idle.append(f'v_mov_b64 {R[mat][i:i+2]}, 0')
        idle = [f's_add_u32 {sMl}, {sMl}, {STEP}'] + idle
        for r_ in (sMH, sKV, sFL, sMn): idle.append(f's_add_u32 {r_}, {r_}, {STEP}')
        idle.append(f's_add_u32 {sStep}, {sStep}, 1'); idle.append(f's_add_u32 {sNeed}, {sNeed}, 1')
        def spend(cyc):
            while cyc > 0 and idle:
                tx = idle.pop(0); a(tx); cyc -= 8 if tx.startswith('ds_') else 4
            delay(cyc)
        def pl():
            a(f'buffer_load_dwordx4 {pd[0:4]}, {l16}, {S_WS}, {sPAr} offen sc1')
            a(f'buffer_load_dwordx4 {pd[4:8]}, {l16}, {S_WS}, {sPAr} offen offset:1024 sc1')
            a.vm = []
        dP = o.get('dP', [120, 200])[late]
        a(self.p1); self.stamp('P1')
        if nh: a('s_waitcnt vmcnt(2)')
        spend(dP); pl(); nout = 0
        a.vm = []
        for tx in idle: a(tx)
        a(f's_waitcnt lgkmcnt(0)\n s_waitcnt vmcnt({nout})')
        a.label(f'{tag}_pollP')
        a(f'v_mfma_f32_16x16x32_bf16 {tB}, {qo}, {pd[0:4]}, 0')
        a(f'v_xor_b32 {x0}, {sTag}, {pd[0]}\n v_xor_b32 {x1}, {sTag}, {pd[4]}')
        a(f'v_mfma_f32_16x16x32_bf16 {tB}, {qo}, {pd[4:8]}, {tB}')
        a(f'v_or_b32 {x0}, {x0}, {x1}\n v_and_b32 {x0}, 1, {x0}\n v_cmp_ne_u32 vcc, 0, {x0}\n s_nop 2')
        a(f's_cbranch_vccnz {tag}_retryP')
        self.stamp('Pok')
        a(f'v_add_f32_dpp {tB[0]}, {tB[0]}, {tB[0]} row_ror:4 row_mask:0xf bank_mask:0xf')
        a(f'v_add_f32_dpp {tB[1]}, {tB[1]}, {tB[1]} row_ror:4 row_mask:0xf bank_mask:0xf')
        a(f'v_add_f32_dpp {tB[0]}, {tB[0]}, {tB[0]} row_ror:8 row_mask:0xf bank_mask:0xf')
        a(f'v_add_f32_dpp {tB[1]}, {tB[1]}, {tB[1]} row_ror:8 row_mask:0xf bank_mask:0xf')
        a(f"v_cvt_pk_bf16_f32 {mout}, {tB[0]}, {tB[1]}")
        a.label(f'{tag}_Mst', flush=False)
        a(f"buffer_store_dword {mout}, {R['mst']}, {S_WS}, {sMn} offen {sc}")
        self.stamp('M')
        a(f"""
        s_xor_b32 {sTag}, {sTag}, 1
        s_cmp_lt_u32 {sStep}, {NSTEPS}
        s_cbranch_scc1 {tag}_step
        """)
        a(f"buffer_store_dword {mout}, {R['mst']}, {S_WS}, {sMH} offen sc1")
        if o.get('stamps') == 2:
            a(f's_memtime {sStamp}\n s_waitcnt lgkmcnt(0)\n s_sub_u32 s50, s46, {sSt0}')
            a(f's_lshl_b32 {sT0}, {sH}, 8\n s_add_u32 {sT0}, {sT0}, {WS_DBG + w*64}')
            a(f'v_mov_b32 {x0}, s50\n buffer_store_dword {x0}, off, {S_WS}, {sT0} offset:0')
            a(f'v_mov_b32 {x0}, s75\n buffer_store_dword {x0}, off, {S_WS}, {sT0} offset:44')
        a('s_waitcnt vmcnt(0)\n s_endpgm')
        cnt = lambda sh: a(f's_add_u32 s75, s75, {1 << sh}') if o.get('stamps') else None
        a.label(f'{tag}_retryE')
        dma()
        cnt(0); self.retry(); a('s_nop 5'); zero('qkv')
        a(f's_waitcnt vmcnt({2*(nM-1)})')
        a(f's_branch {tag}_bA')
        a.label(f'{tag}_retryP')
        pl(); cnt(16); self.retry()
        a(f's_waitcnt vmcnt(0)\n s_branch {tag}_pollP')
        if w == 3:
            a.label(f'{tag}_slowflag')
            self.wait_flag(f'{tag}_sf')
            a(f's_branch {tag}_flagok')
        if nh:
            a.label(f'{tag}_hint')
            a.vm = []
            ld = lambda i: (a(f'buffer_load_dword {k_[i]}, {R["hst"]}, {S_WS}, {sHint} offen sc1'), a.vm.clear())
            ck = lambda i: a(f'v_cmp_gt_u32 vcc, {sNeed}, {k_[i]}\n s_cmp_lg_u32 vcc_lo, 0\n s_cbranch_scc0 {tag}_hintok')
            for i in range(1, nh):
                ld(3 + i); cnt(24)
                a(f's_waitcnt vmcnt({nh-1})'); ck(i)
            for i in range(nh - 1, 3): a('s_nop 7'); ld(4 + i)
            a.label(f'{tag}_hintl', flush=False)
            for i in range(4):
                ld(4 + (i + 3) % 4)
                a('s_waitcnt vmcnt(3)'); ck(4 + i)
            cnt(24); self.retry()
            a(f's_branch {tag}_hintl')
        a.label(f'{tag}_fallback')
        a.lgkm = []; a.vm = []
        a('s_nop 7')
        if nh: a('s_waitcnt vmcnt(0)')
        s0, s1, u0, u1 = k_[0:4], k_[4:8], tB, tC
        a(f'v_and_b32 {x1}, 0xffffffdf, {l16}')
        for ww in range(4):
            d0, d1 = (s0, s1) if ww == 0 else (u0, u1)
            a(f'ds_read_b128 {d0}, {x1} offset:{L_SX + ww*1024}')
            a(f'ds_read_b128 {d1}, {x1} offset:{L_SX + ww*1024 + 32}')
            if ww:
                for i in range(4): a(f'v_add_f32 {s0[i]}, {s0[i]}, {u0[i]}\n v_add_f32 {s1[i]}, {s1[i]}, {u1[i]}')
        mx = x0
        a(f'v_max3_f32 {mx}, {s0[0]}, {s0[1]}, {s0[2]}\n v_max3_f32 {mx}, {mx}, {s0[3]}, {s1[0]}\n v_max3_f32 {mx}, {mx}, {s1[1]}, {s1[2]}\n v_max3_f32 {mx}, {mx}, {s1[3]}, {tE[0]}')
        a(f'v_max_f32_dpp {mx}, {mx}, {mx} {DPPX}')
        a(f'v_mov_b32 {x1}, {mx}\n v_permlane16_swap_b32 {mx}, {x1}\n v_max_f32 {mx}, {mx}, {x1}')
        a(f'v_mov_b32 {x1}, {mx}\n v_permlane32_swap_b32 {mx}, {x1}\n v_max_f32 {mx}, {mx}, {x1}')
        for i in range(8): a(f'v_sub_f32 {k_[i]}, {k_[i]}, {mx}\n v_exp_f32 {k_[i]}, {k_[i]}')
        a(f'v_sub_f32 {tE[1]}, {tE[0]}, {mx}\n v_exp_f32 {tE[1]}, {tE[1]}')
        a(f'v_mov_b32_dpp {tE[2]}, {tE[1]} {DPPX}')
        a(f'v_cvt_pk_bf16_f32 {tE[1]}, {tE[1]}, {tE[2]}')
        a(f'v_cndmask_b32 {tF[0]}, {tE[1]}, 0, {sHB}\n v_cndmask_b32 {tF[1]}, 0, {tE[1]}, {sHB}')
        for i in range(4):
            a(f'v_cvt_pk_bf16_f32 {x1}, {k_[2*i]}, {k_[2*i+1]}')
            a(f'v_cndmask_b32 {tB[i]}, {x1}, 0, {sHB}\n v_cndmask_b32 {tC[i]}, 0, {x1}, {sHB}')
        a(f"v_mfma_f32_16x16x32_bf16 {Oacc}, {R['vx'][0:4]}, {tB}, 0")
        a(f"v_mfma_f32_16x16x32_bf16 {Oacc}, {R['vx'][4:8]}, {tC}, {Oacc}")
        a(f"v_mfma_f32_16x16x32_bf16 {Lacc}, {ones}, {tB}, 0")
        a(f"v_mfma_f32_16x16x16_bf16 {Lacc}, {ones[0:2]}, {tF}, {Lacc}")
        a(f'v_mfma_f32_16x16x16_bf16 {Oacc}, {vp}, {tF}, {Oacc}')
        a(f'v_rcp_f32_dpp {x0}, {Lacc[0]} {DPPB}')
        for i in range(nh): a(f'v_mov_b32 {k_[i]}, -1')
        a('s_mov_b64 vcc, 0')
        a.flush()
        a(f's_branch {tag}_norm')
```

```python
WS_PA   = 0x000000
WS_HINT = 0x040000
WS_DBG  = 0x1C0000
WS_STEP = 0x1000000
STEP    = 0x100000
O_KV    = 0x00000
O_M     = 0xC0000
O_MH    = 0xC2000
O_FKV   = 0xC4000
O_FO    = 0xC4800
O_FILL_END = 0xC5000
WS_ST   = 0x6000000
WS_O    = 0xA000000
WS_B    = 0xB000000
WS_DUMP = 0xC000000
WS_SIZE = 0x10000000
CSCALE  = (128 ** -0.5) * 1.4426950408889634
KA_X, KA_MEM0, KA_WQ, KA_WK, KA_WV, KA_WO, KA_SEG, KA_BQ, KA_BK, KA_BV, KA_SHIFT, KA_SSMK, KA_SSMD, KA_GATE, KA_OUT, KA_DBG, KA_WS = [8*i for i in range(17)]
def fpos(k):
    return (k >> 1) + 4 * (k & 1)
```

```python
from asmlib import I

def icost(c):
    op = c.op
    if c.kind == 'valu':
        return 8 if (c.trans or op.startswith('v_permlane')) else 4
    if c.kind == 'ds':
        if c.dst: return 8
        n = len(c.data)
        return {1: 16, 2: 24, 3: 40, 4: 44}[n]
    if c.kind == 'vmem':
        if c.data and len(c.data) >= 3: return 56
        return 18
    if op == 's_barrier': return 16
    if op.startswith('s_cbranch'): return 8
    if op == 's_nop': return c.cost()
    return 4

class Node:
    def __init__(self, texts, earliest=0, name=None, emit=None, bias=0):
        self.texts = [texts] if isinstance(texts, str) else list(texts)
        self.ins = [I(t) for t in self.texts]
        self.src = set(); self.dst = set()
        for c in self.ins:
            self.src |= set(c.src); self.dst |= set(c.dst)
            if c.kind in ('valu', 'ds', 'vmem'): self.src.add(('exec', 0))
            if c.kind == 'salu' and not c.op.startswith(('s_mov', 's_barrier', 's_waitcnt', 's_nop', 's_cbranch', 's_branch')): self.dst.add(('scc', 0))
            if c.op.startswith(('s_cbranch_scc', 's_cselect', 's_addc')): self.src.add(('scc', 0))
        self.first = self.ins[0]; self.last = self.ins[-1]
        self.cost = sum(icost(c) for c in self.ins)
        self.earliest = earliest
        self.name = name; self.emit = emit; self.bias = bias
        self.preds = []
        self.succs = []
        self.t = None

def raw_lat(p, c, regs):
    off = 0; lat = 0
    for ins in p.ins:
        if set(ins.dst) & regs:
            k = c.first
            cons = [x for x in c.ins if set(x.src) & regs] or [k]
            k = cons[0]
            if ins.kind == 'mfma':
                if k.kind == 'mfma' and ins.dst == k.srcC and not (set(ins.dst) & (set(k.srcA) | set(k.srcB))):
                    l = 4 * ins.passes if ins.op == k.op else 28
                else: l = 36 if ins.passes == 4 else 52
            elif ins.kind == 'valu':
                l = icost(ins)
                if k.kind == 'mfma' or (k.kind == 'valu' and (k.dpp or k.op.startswith('v_permlane'))): l = max(l, 12) if not ins.trans else 16
                elif ins.trans: l = 12
                if any(r[0] in ('s', 'vcc') for r in regs): l = 24 if k.kind != 'valu' else 12
            elif ins.kind == 'ds': l = 68
            elif ins.kind == 'vmem': l = 300
            else: l = 4
            lat = max(lat, off + l)
        off += icost(ins)
    return lat

class Sched:
    def __init__(self):
        self.nodes = []
    def add(self, texts, after=(), earliest=0, name=None, emit=None, bias=0):
        n = Node(texts, earliest, name, emit, bias)
        for p in self.nodes:
            r = p.dst & n.src
            lat = None
            if r: lat = raw_lat(p, n, r)
            if p.src & n.dst: lat = max(lat or 0, p.cost if p.first.kind != 'mfma' else (16 if (set(p.first.srcC) & n.dst and n.first.kind == 'valu') else 4))
            if p.dst & n.dst and not r: lat = max(lat or 0, 36 if p.last.kind == 'mfma' else p.cost)
            if lat is not None: n.preds.append((p, lat))
        for x in after:
            p, lat = x if isinstance(x, tuple) else (x, None)
            if p is None: continue
            if lat is None:
                lat = p.cost
                if p.last.kind == 'ds' or any(c.kind == 'ds' for c in p.ins):
                    if n.first.op == 's_barrier': lat = p.cost + (44 if not p.last.dst else 60)
            n.preds.append((p, lat))
        for p, l in n.preds: p.succs.append((n, l))
        self.nodes.append(n)
        return n

    def run(self, tol=4, verbose=False, mfirst=4, bulk_after=0):
        N = self.nodes
        for n in reversed(N):
            n.prio = n.cost + (n.bias if n.bias < 2000 else 0)
            for s, l in n.succs: n.prio = max(n.prio, l + s.prio)
        for n in N:
            if n.bias >= 2000: n.prio = 10000
        t = 0; mfree = 0; vfree = 0; ldsfree = 0
        done = []; left = list(N)
        def start(n):
            r = max(t, n.earliest)
            for p, l in n.preds:
                r = max(r, p.t + l + getattr(p, 'extra', 0))
            if n.first.kind == 'mfma': r = max(r, mfree)
            elif n.first.kind == 'valu': r = max(r, vfree)
            return r
        while left:
            avail = [n for n in left if all(p.t is not None for p, _ in n.preds)]
            st = {id(n): start(n) for n in avail}
            srt = sorted(avail, key=lambda n: (-n.prio, st[id(n)]))
            pick = None
            for i, c in enumerate(srt):
                s0 = st[id(c)]
                ok = True
                for h in srt[:i]:
                    if st[id(h)] <= s0: ok = False; break
                    fin = s0 + c.cost
                    if c.last.kind == 'mfma':
                        if h.first.kind == 'mfma': fin = max(fin, s0 + c.cost - 4 + 4 * c.last.passes)
                        elif h.first.kind == 'valu': fin = max(fin, s0 + c.cost - 4 + c.last.hold)
                    delay = fin - st[id(h)]
                    hs = (st[id(srt[0])] + srt[0].prio) - (st[id(h)] + h.prio)
                    if delay > tol + max(0, hs) and not (h.cost + c.prio > delay + h.prio): ok = False; break
                if ok and (pick is None or s0 < st[id(pick)]): pick = c
            if pick.first.kind != 'mfma':
                nbulk = sum(1 for n in left if n.first.kind == 'mfma')
                for c in srt:
                    if c.first.kind == 'mfma' and st[id(c)] <= st[id(pick)] + 4:
                        fin = st[id(c)] + (c.last.hold if pick.first.kind == 'valu' else 4)
                        if fin - st[id(pick)] <= mfirst:
                            blocked = any(h.first.kind == 'mfma' and h.prio > c.prio and st[id(h)] < st[id(c)] + 16 - tol for h in srt if h is not c)
                            if not blocked: pick = c
                        break
            s = st[id(pick)]
            pick.t = s
            tt = s
            for c in pick.ins:
                if c.kind == 'mfma':
                    tt = max(tt, mfree); mfree = tt + 4 * c.passes; vfree = tt + c.hold
                elif c.kind == 'valu': tt = max(tt, vfree)
                if c.kind == 'ds':
                    svc = (16 if len(c.dst) == 4 else 8) if c.dst else icost(c)
                    beg = max(tt, ldsfree); ldsfree = beg + svc
                    pick.extra = beg - tt
                tt += icost(c)
            t = tt
            done.append(pick); left.remove(pick)
        self.order = done
        self.makespan = t
        if verbose:
            for n in done: print(f'{n.t:5d} p{n.prio:5d} {" | ".join(n.texts)[:110]}')
        return done
```

```python
from asmlib import *
from layout import *
from chain import S_WS, S_W, S_DBG, sH, sW, sTO, sHB, DPPX, f32bits
D_READY, D_MASK, D_OVF, D_WINIT, D_SSM = 4, 8, 160, 192, 196
L_RING = 0x8000

def srd(a, dst, ka, nbytes):
    a(f's_load_dwordx2 s[{dst}:{dst+1}], s[0:1], {ka}\n s_mov_b32 s{dst+2}, {nbytes}\n s_mov_b32 s{dst+3}, 0x20000')

def retry(a):
    a(f's_sub_u32 {sTO}, {sTO}, 1\n s_cbranch_scc1 L_exit')

def wait_word(a, tag, off, val, v):
    a.label(tag)
    a(f'buffer_load_dword {v}, off, {S_DBG}, 0 offset:{off} sc1')
    retry(a)
    a(f's_waitcnt vmcnt(0)\n v_readfirstlane_b32 s4, {v}\n s_cmp_ge_u32 s4, {val}\n s_cbranch_scc1 {tag}_ok\n s_sleep 4\n s_branch {tag}')
    a.label(f'{tag}_ok')

def attn(a, o):
    S_X = 's[28:31]'
    sT0, sT1, sXo, sKVo, sFK, sMH, sOo, sFO, sI, sC, sM0 = ['s%d' % i for i in range(32, 43)]
    mk = ['s[%d:%d]' % (44 + 2*r, 45 + 2*r) for r in range(4)]
    L_X, L_S0, L_KM = 0, 0x8000, 0x18000
    W = {}
    for t in range(2):
        for k in range(8):
            W['k', t, k] = Reg('a', (t*8 + k)*8, 8)
            W['v', t, k] = Reg('a', 128 + (t*8 + k)*8, 8)
            W['q', t, k] = Reg('v', 128 + (t*8 + k)*8, 8)
    P = Pool('v', 1, 128)
    l16, vj, vg, xo, vS, vSw, vKM, idx, neg, pol = [P.alloc(1) for _ in range(10)]
    tc = P.alloc(2); ones = P.alloc(4); pm = [P.alloc(4), P.alloc(4)]
    a.label('L_attn')
    a.lgkm = []; a.vm = []
    srd(a, 28, KA_X, 2048*1024)
    sptr = {'q': 60, 'k': 62, 'v': 64}
    for m, ka in (('q', KA_WQ), ('k', KA_WK), ('v', KA_WV)): a(f's_load_dwordx2 s[{sptr[m]}:{sptr[m]+1}], s[0:1], {ka}')
    a(f'''
    s_lshr_b32 {sH}, s5, 5
    s_sub_u32 {sH}, {sH}, 1
    s_lshl_b32 {sH}, {sH}, 3
    s_and_b32 {sT0}, s5, 7
    s_add_u32 {sH}, {sH}, {sT0}
    s_bfe_u32 {sI}, s5, 0x20003
    s_lshl_b32 {sXo}, {sI}, 15
    s_lshr_b32 {sT0}, {sW}, 1
    s_lshl_b32 {sT0}, {sT0}, 14
    s_add_u32 {sXo}, {sXo}, {sT0}
    s_and_b32 {sT0}, {sW}, 1
    s_lshl_b32 {sT0}, {sT0}, 9
    s_add_u32 {sXo}, {sXo}, {sT0}
    s_lshl_b32 {sMH}, {sI}, 20
    s_add_u32 {sMH}, {sMH}, {WS_STEP}
    s_lshl_b32 {sT0}, {sH}, 6
    s_add_u32 {sFK}, {sMH}, {sT0}
    s_add_u32 {sFO}, {sFK}, {O_FO}
    s_add_u32 {sFK}, {sFK}, {O_FKV}
    s_lshl_b32 {sT0}, {sH}, 2
    s_add_u32 {sT0}, {sT0}, {sW}
    s_lshl_b32 {sT1}, {sT0}, 12
    s_add_u32 {sKVo}, {sMH}, {sT1}
    s_add_u32 {sMH}, {sMH}, {O_MH}
    s_lshl_b32 {sOo}, {sI}, 18
    s_lshl_b32 {sT1}, {sT0}, 10
    s_add_u32 {sOo}, {sOo}, {sT1}
    s_add_u32 {sOo}, {sOo}, {WS_O}
    s_lshl_b32 {sM0}, {sW}, 13
    s_mov_b32 {sC}, {f32bits(CSCALE)}
    s_mov_b32 s24, 0xcccccccc
    s_mov_b32 s25, 0xcccccccc
    v_and_b32 {l16}, 63, v0
    v_and_b32 {vj}, 15, v0
    v_lshrrev_b32 {vg}, 4, {l16}
    v_lshlrev_b32 {pol}, 7, {l16}
    v_lshlrev_b32 {l16}, 4, {l16}
    v_lshlrev_b32 {xo}, 4, {vg}
    v_lshl_add_u32 {xo}, {vj}, 10, {xo}
    s_waitcnt lgkmcnt(0)
    s_barrier
    ''')
    def xdma():
        a(f's_mov_b32 m0, {sM0}')
        for i in range(8):
            a(f'buffer_load_dwordx4 {xo}, {S_X}, {sXo} offen offset:{64*i} lds')
            if i < 7: a(f's_add_u32 m0, m0, {1024-64}')
        a(f's_add_u32 {sXo}, {sXo}, {4*32768}')
    xdma()
    T = P.alloc(8)
    ga0, ga1, rt0, rt1 = T[0], T[1], T[2], T[3]; X = T[4:8]
    a(f'''
    v_lshlrev_b32 {ga0}, 1, {vg}
    v_xor_b32 {ga0}, {ga0}, {vj}
    v_xor_b32 {ga1}, 8, {ga0}
    v_lshlrev_b32 {ga0}, 4, {ga0}
    v_lshlrev_b32 {ga1}, 4, {ga1}
    v_lshl_add_u32 {ga0}, {vg}, 13, {ga0}
    v_lshl_add_u32 {ga1}, {vg}, 13, {ga1}
    v_lshrrev_b32 {X[0]}, 2, {vj}
    v_and_b32 {X[1]}, 1, {vg}
    v_lshl_or_b32 {X[1]}, {X[1]}, 2, {X[0]}
    v_lshl_add_u32 {X[0]}, {vg}, 3, {X[0]}
    v_lshlrev_b32 {X[0]}, 8, {X[0]}
    v_and_b32 {X[2]}, 3, {vj}
    v_lshl_add_u32 {X[0]}, {X[2]}, 3, {X[0]}
    s_lshl_b32 {sT0}, {sW}, 1
    v_xor_b32 {rt0}, {sT0}, {X[1]}
    v_xor_b32 {rt1}, 1, {rt0}
    v_lshl_add_u32 {rt0}, {rt0}, 5, {X[0]}
    v_lshl_add_u32 {rt1}, {rt1}, 5, {X[0]}
    v_add_u32 {rt0}, {L_RING}, {rt0}
    v_add_u32 {rt1}, {L_RING}, {rt1}
    s_lshl_b32 s66, {sW}, 18
    s_lshl_b32 {sT0}, {sH}, 8
    s_add_u32 s66, s66, {sT0}
    s_mov_b32 s14, 0x400000
    s_mov_b32 s15, 0x20000
    ''')
    chunks = [(m, c) for m in 'kvq' for c in range(4)]
    def issue(ci):
        m, c = chunks[ci]
        a(f's_mov_b32 s12, s{sptr[m]}\n s_mov_b32 s13, s{sptr[m]+1}\n s_add_u32 {sT0}, s66, {128*c*8192}\n s_add_u32 m0, {sM0}, {L_RING + (ci & 3)*32768}')
        for i in range(8):
            a(f'buffer_load_dwordx4 {(ga0, ga1)[(i >> 1) & 1]}, {S_W}, {sT0} offen lds')
            if i < 7: a(f's_add_u32 {sT0}, {sT0}, 32768\n s_add_u32 m0, m0, 1024')
    for ci in range(4): issue(ci)
    c2, t1, t2 = X[0], X[1], X[2]
    a(f'''
    v_lshrrev_b32 {c2}, 2, {vj}
    v_and_b32 {t1}, 1, {vj}
    v_mov_b32 {idx}, 0x4444
    v_mov_b32 {t2}, 0xeeee
    v_cndmask_b32 {idx}, {idx}, {t2}, {sHB}
    v_lshlrev_b32 {t1}, 4, {t1}
    v_mov_b32 {t2}, 0x3f80
    v_lshlrev_b32 {t2}, {t1}, {t2}
    v_cmp_eq_u32 vcc, {vg}, {c2}
    v_cndmask_b32 {t1}, 0, {t2}, vcc
    v_cndmask_b32 {tc[0]}, {t1}, 0, {sHB}
    v_cndmask_b32 {tc[1]}, 0, {t1}, {sHB}
    v_mov_b32 {neg}, 0xf149f2ca
    v_lshlrev_b32 {t1}, 2, {vg}
    v_add_u32 {vS}, {L_S0}, {l16}
    s_lshl_b32 {sT0}, {sW}, 10
    v_add_u32 {vSw}, {sT0}, {vS}
    v_add_u32 {vKM}, {L_KM}, {l16}
    ''')
    for r in range(4):
        a(f'v_cmp_gt_u32 {mk[r]}, {t1}, {vj}')
        if r < 3: a(f'v_add_u32 {t1}, 1, {t1}')
        a(f'v_mov_b32 {ones[r]}, 0x3f803f80')
    for b in range(2): a(f'v_mov_b32 {pm[b][1]}, 0\n v_mov_b32 {pm[b][2]}, 0')
    for ci, (m, c) in enumerate(chunks):
        a(f's_waitcnt vmcnt({8*min(3, 11 - ci)})\n s_barrier')
        if ci > 0:
            d_ = 32768 if (ci & 3) else -3 * 32768
            a(f'v_add_u32 {rt0}, {d_ & 0xffffffff}, {rt0}\n v_add_u32 {rt1}, {d_ & 0xffffffff}, {rt1}')
        for kl in range(2):
            for t in range(2):
                d = W[m, t, 2*c + kl]
                for u in range(2):
                    for v in range(2):
                        a(f'ds_read_b64_tr_b16 {d[4*u+2*v:4*u+2*v+2]}, {(rt0, rt1)[t]} offset:{(64*kl + 32*u + 4*v) * 256}')
        a('s_waitcnt lgkmcnt(0)\n s_barrier')
        if ci + 4 < 12: issue(ci + 4)
    a.vm = []
    P.release(T)
    x0, x1 = P.alloc(1), P.alloc(1)
    wait_word(a, 'L_at_rdy', D_READY, 32, x0)
    a(f's_mov_b32 {sI}, -2\n s_branch L_at_qkv')
    Q = P.alloc(32); Mr = P.alloc(32); V = P.alloc(8); S = P.alloc(12); kv = P.alloc(16)
    a.label('L_at_loop')
    a.lgkm = []; a.vm = []
    q = lambda b, w_: Q[16*b + 4*w_: 16*b + 4*w_ + 4]
    kx = lambda a_, w_: Mr[16*a_ + 4*w_: 16*a_ + 4*w_ + 4]
    for w_ in range(4):
        for b in range(2): a(f'ds_read_b128 {q(b, w_)}, {vS} offset:{(4*b + w_)*1024}')
        for b in range(2): a(f'ds_read_b128 {kx(b, w_)}, {vS} offset:{0x2000 + (4*b + w_)*1024}')
    for t in range(2): a(f'ds_read_b128 {V[4*t:4*t+4]}, {vSw} offset:{0x4000 + t*4096}')
    tiles = [(0, 0), (0, 1), (1, 1)]
    for w_ in range(4):
        for n, (a_, b) in enumerate(tiles):
            a(f'v_mfma_f32_16x16x32_bf16 {S[4*n:4*n+4]}, {kx(a_, w_)}, {q(b, w_)}, {S[4*n:4*n+4] if w_ else 0}')
    for i in range(0, 16, 2): a(f'v_mov_b64 {kv[i:i+2]}, 0')
    for n in (0, 2):
        for r in range(4): a(f'v_cndmask_b32 {S[4*n+r]}, {S[4*n+r]}, {neg}, {mk[r]}')
    mx = [pm[0][0], pm[1][0]]
    a(f'v_max3_f32 {mx[0]}, {S[0]}, {S[1]}, {S[2]}\n v_max_f32 {mx[0]}, {mx[0]}, {S[3]}')
    a(f'v_max3_f32 {mx[1]}, {S[4]}, {S[5]}, {S[6]}\n v_max3_f32 {mx[1]}, {mx[1]}, {S[7]}, {S[8]}\n v_max3_f32 {mx[1]}, {mx[1]}, {S[9]}, {S[10]}\n v_max_f32 {mx[1]}, {mx[1]}, {S[11]}')
    a('s_waitcnt lgkmcnt(0)')
    a.label('L_at_poll')
    a(f'buffer_load_dword {x0}, {pol}, {S_WS}, {sMH} offen offset:124 sc1')
    retry(a)
    a(f's_waitcnt vmcnt(0)\n v_cmp_eq_u32 vcc, -1, {x0}\n s_cbranch_vccz L_at_got\n s_sleep 1\n s_branch L_at_poll')
    a.label('L_at_got')
    m = lambda k: Mr[4*k:4*k+4]
    a(f's_add_u32 {sT0}, {sMH}, 4096')
    for k in range(8):
        p_ = fpos(k)
        a(f'buffer_load_dwordx4 {m(k)}, {l16}, {S_WS}, {(sMH, sT0)[p_ >> 2]} offen offset:{(p_ & 3)*1024} sc1')
    a(f'v_max3_u32 {x0}, {Mr[0]}, {Mr[1]}, {Mr[2]}')
    for i in range(3, 31, 2): a(f'v_max3_u32 {x0}, {x0}, {Mr[i]}, {Mr[i+1]}')
    a(f'v_max_u32 {x0}, {x0}, {Mr[31]}\n v_cmp_eq_u32 vcc, -1, {x0}\n s_cbranch_vccnz L_at_poll')
    kA, vA = kv[0:8], kv[8:16]
    for k in range(8):
        for t in range(2): a(f"v_smfmac_f32_16x16x64_bf16 {kA[4*t:4*t+4]}, {m(k)}, {W['k', t, k]}, {idx}")
    vs = [f"v_smfmac_f32_16x16x64_bf16 {vA[4*t:4*t+4]}, {m(k)}, {W['v', t, k]}, {idx}" for k in range(8) for t in range(2)]
    def vm_(n):
        for _ in range(n):
            if vs: a(vs.pop(0))
    vm_(3)
    for t in range(2): a(f'v_add_f32 {kA[4*t]}, {kA[4*t]}, {kA[4*t+2]}\n v_add_f32 {kA[4*t+1]}, {kA[4*t+1]}, {kA[4*t+3]}')
    a(f'v_cvt_pk_bf16_f32 {kA[0]}, {kA[0]}, {kA[1]}\n v_cvt_pk_bf16_f32 {kA[1]}, {kA[4]}, {kA[5]}')
    vm_(1)
    a(f'v_mfma_f32_16x16x16_bf16 {kA[4:8]}, {kA[0:2]}, {tc}, 0')
    vm_(3)
    a(f'v_cvt_pk_bf16_f32 {kA[0]}, {kA[4]}, {kA[5]}\n v_cvt_pk_bf16_f32 {kA[1]}, {kA[6]}, {kA[7]}')
    vm_(1)
    a(f'v_mov_b32_dpp {kA[2]}, {kA[0]} {DPPX}\n v_mov_b32_dpp {kA[3]}, {kA[1]} {DPPX}')
    a(f's_lshl_b32 {sT0}, {sW}, 10\n v_add_u32 {x1}, {sT0}, {vKM}')
    a(f'ds_write_b128 {x1}, {kA[0:4]}')
    vm_(8)
    a('s_waitcnt lgkmcnt(0)\n s_barrier')
    km = lambda w_: Mr[4*w_:4*w_+4]
    for w_ in range(4): a(f'ds_read_b128 {km(w_)}, {vKM} offset:{w_*1024}')
    Sm = [Mr[16:20], Mr[20:24]]
    for t in range(2): a(f'v_add_f32 {vA[4*t]}, {vA[4*t]}, {vA[4*t+2]}\n v_add_f32 {vA[4*t+1]}, {vA[4*t+1]}, {vA[4*t+3]}')
    a(f'v_cvt_pk_bf16_f32 {vA[0]}, {vA[0]}, {vA[1]}\n v_cvt_pk_bf16_f32 {vA[1]}, {vA[4]}, {vA[5]}')
    for w_ in range(4):
        for b in range(2): a(f'v_mfma_f32_16x16x32_bf16 {Sm[b]}, {km(w_)}, {q(b, w_)}, {Sm[b] if w_ else 0}')
    for b in range(2):
        a(f'v_mul_f32 {Sm[b][0]}, {sC}, {Sm[b][0]}\n v_mul_f32 {Sm[b][1]}, {sC}, {Sm[b][1]}')
        a(f'v_max3_f32 {mx[b]}, {mx[b]}, {Sm[b][0]}, {Sm[b][1]}')
    xs = [x0, x1]
    for sw in ('v_permlane16_swap_b32', 'v_permlane32_swap_b32'):
        for b in range(2): a(f'v_mov_b32 {xs[b]}, {mx[b]}')
        for b in range(2): a(f'{sw} {mx[b]}, {xs[b]}')
        for b in range(2): a(f'v_max_f32 {mx[b]}, {mx[b]}, {xs[b]}')
    el = [(S[i], mx[0]) for i in range(4)] + [(Sm[0][i], mx[0]) for i in range(2)] + [(S[i], mx[1]) for i in range(4, 12)] + [(Sm[1][i], mx[1]) for i in range(2)]
    for r_, m_ in el: a(f'v_sub_f32 {r_}, {r_}, {m_}')
    for r_, m_ in el: a(f'v_exp_f32 {r_}, {r_}')
    for i in range(6): a(f'v_cvt_pk_bf16_f32 {S[i]}, {S[2*i]}, {S[2*i+1]}')
    for b in range(2): a(f'v_cvt_pk_bf16_f32 {pm[b][0]}, {Sm[b][0]}, {Sm[b][1]}\n v_cvt_pk_bf16_f32 {pm[b][3]}, {Sm[b][0]}, {Sm[b][1]}')
    O = lambda b, t: Mr[8*b + 4*t: 8*b + 4*t + 4]
    L = [Mr[24:28], Mr[28:32]]
    a(f'v_mfma_f32_16x16x32_bf16 {L[1]}, {ones}, {S[2:6]}, 0')
    for t in range(2): a(f'v_mfma_f32_16x16x32_bf16 {O(1, t)}, {V[4*t:4*t+4]}, {S[2:6]}, 0')
    a(f'v_mfma_f32_16x16x16_bf16 {L[0]}, {ones[0:2]}, {S[0:2]}, 0')
    for t in range(2): a(f'v_mfma_f32_16x16x16_bf16 {O(0, t)}, {V[4*t:4*t+2]}, {S[0:2]}, 0')
    for b in (0, 1):
        a(f'v_mfma_f32_16x16x16_bf16 {L[b]}, {ones[0:2]}, {pm[b][0:2]}, {L[b]}')
        for t in range(2): a(f'v_mfma_f32_16x16x16_bf16 {O(b, t)}, {vA[0:2]}, {pm[b][2*t:2*t+2]}, {O(b, t)}')
    a(f's_add_u32 {sT0}, {sOo}, 0x20000')
    for b in range(2):
        a(f'v_rcp_f32 {xs[b]}, {L[b][0]}')
        for i in range(8): a(f'v_mul_f32 {Mr[8*b+i]}, {Mr[8*b+i]}, {xs[b]}')
        for i in range(4): a(f'v_cvt_pk_bf16_f32 {Mr[8*b+i]}, {Mr[8*b+2*i]}, {Mr[8*b+2*i+1]}')
        a(f'buffer_store_dwordx4 {Mr[8*b:8*b+4]}, {l16}, {S_WS}, {(sOo, sT0)[b]} offen sc1')
    a(f'''v_mov_b32 {x0}, 1
    s_waitcnt vmcnt(0)
    s_barrier
    s_cmp_lg_u32 {sW}, 0
    s_cbranch_scc1 L_at_nf
    buffer_store_dword {x0}, off, {S_WS}, {sFO} sc1''')
    a.label('L_at_nf')
    a(f'''s_add_u32 {sMH}, {sMH}, {4*STEP}
    s_add_u32 {sFO}, {sFO}, {4*STEP}
    s_add_u32 {sOo}, {sOo}, {4*0x40000}
    s_cmp_ge_i32 {sI}, 14
    s_cbranch_scc1 L_at_next''')
    a.label('L_at_qkv')
    a.lgkm = []; a.vm = []
    a('s_waitcnt vmcnt(0)\n s_barrier')
    acc = {}
    for n, (mat, t, b) in enumerate([(mat, t, b) for mat in 'kv' for b in range(2) for t in range(2)]): acc[mat, t, b] = Q[4*n:4*n+4]
    for n, (t, b) in enumerate([(t, b) for b in range(2) for t in range(2)]): acc['q', t, b] = kv[4*n:4*n+4]
    xf = lambda k, b: Mr[8*(k % 4) + 4*b: 8*(k % 4) + 4*b + 4]
    def xr(k):
        for b in range(2): a(f'ds_read_b128 {xf(k, b)}, {l16} offset:{L_X + (16*b + k)*1024}')
    xr(0); xr(1)
    for k in range(16):
        if k + 2 < 16: xr(k + 2)
        for mat in 'kvq':
            for b in range(2):
                for t in range(2):
                    w_ = W[mat, t, k >> 1][4*(k & 1):4*(k & 1)+4]
                    A_, B_ = (xf(k, b), w_) if mat == 'v' else (w_, xf(k, b))
                    d = acc[mat, t, b]
                    a(f'v_mfma_f32_16x16x32_bf16 {d}, {A_}, {B_}, {d if k else 0}')
    ko = [Mr[0:4], Mr[4:10]]; vo = [Mr[12:16], Mr[16:20]]; qo = [Mr[20:24], Mr[24:28]]
    for b in range(2):
        for t in range(2):
            d = acc['k', t, b]
            for r in range(4): a(f'v_mul_f32 {d[r]}, {sC}, {d[r]}')
            for r in range(2): a(f'v_cvt_pk_bf16_f32 {ko[b][2*t+r]}, {d[2*r]}, {d[2*r+1]}')
    a(f'v_mov_b64 {ko[1][4:6]}, {ko[1][0:2]}')
    a(f'buffer_store_dwordx4 {ko[0]}, {l16}, {S_WS}, {sKVo} offen sc1')
    a(f'buffer_store_dwordx4 {ko[1][2:6]}, {l16}, {S_WS}, {sKVo} offen offset:1024 sc1')
    for t in range(2):
        for b in range(2):
            d = acc['v', t, b]
            for r in range(2): a(f'v_cvt_pk_bf16_f32 {vo[t][2*b+r]}, {d[2*r]}, {d[2*r+1]}')
        a(f'buffer_store_dwordx4 {vo[t]}, {l16}, {S_WS}, {sKVo} offen offset:{2048 + 1024*t} sc1')
    for b in range(2):
        for t in range(2):
            d = acc['q', t, b]
            for r in range(2): a(f'v_cvt_pk_bf16_f32 {qo[b][2*t+r]}, {d[2*r]}, {d[2*r+1]}')
    for b in range(2):
        a(f'ds_write_b128 {vSw}, {qo[b]} offset:{4096*b}')
        a(f'ds_write_b128 {vSw}, {ko[b][0:4]} offset:{0x2000 + 4096*b}')
        a(f'ds_write_b128 {vSw}, {vo[b]} offset:{0x4000 + 4096*b}')
    a(f'''v_mov_b32 {x0}, 1
    s_waitcnt vmcnt(0) lgkmcnt(0)
    s_barrier
    s_cmp_lg_u32 {sW}, 0
    s_cbranch_scc1 L_at_nf2
    buffer_store_dword {x0}, off, {S_WS}, {sFK} sc1''')
    a.label('L_at_nf2')
    a(f's_add_u32 {sKVo}, {sKVo}, {4*STEP}\n s_add_u32 {sFK}, {sFK}, {4*STEP}\n s_cmp_ge_i32 {sI}, 13\n s_cbranch_scc1 L_at_next')
    xdma()
    a.label('L_at_next')
    a(f'''v_xor_b32 {vS}, 0x18000, {vS}
    v_xor_b32 {vSw}, 0x18000, {vSw}
    s_add_u32 {sI}, {sI}, 1
    s_cmp_lt_i32 {sI}, 0
    s_cbranch_scc1 L_at_qkv
    s_cmp_lt_i32 {sI}, 16
    s_cbranch_scc1 L_at_loop
    s_waitcnt vmcnt(0)
    s_endpgm''')

def outp(a, o):
    S_X, S_A, S_B = 's[28:31]', 's[32:35]', 's[36:39]'
    sT0, sT1, sU, sCh, sSeg, sFO, sOo, sRow = ['s%d' % i for i in range(40, 48)]
    P = Pool('v', 1, 256)
    l16, vj, vg, x0, x1 = [P.alloc(1) for _ in range(5)]
    a.label('L_outp')
    a.lgkm = []; a.vm = []
    srd(a, 28, KA_X, 2048*1024)
    a(f'''
    s_sub_u32 {sU}, s5, 160
    v_and_b32 {l16}, 63, v0
    v_and_b32 {vj}, 15, v0
    v_lshrrev_b32 {vg}, 4, {l16}
    v_lshlrev_b32 {l16}, 4, {l16}
    s_barrier
    s_cmp_ge_u32 {sU}, 64
    s_cbranch_scc1 L_op_start
    ''')
    srd(a, 32, KA_BK, 2048*1024); srd(a, 36, KA_BV, 2048*1024); srd(a, 12, KA_SSMK, 2048*1024)
    a(f's_load_dwordx2 s[6:7], s[0:1], {KA_SHIFT}\n s_load_dwordx2 s[48:49], s[0:1], {KA_SSMD}')
    Kr = P.alloc(44); Vr = P.alloc(32); U = P.alloc(32); vo, vo2, ti = P.alloc(1), P.alloc(1), P.alloc(1)
    a(f'''
    s_lshl_b32 {sT0}, {sU}, 4
    v_lshlrev_b32 {vo}, 13, v0
    v_add_u32 {vo}, {sT0}, {vo}
    v_add_u32 {vo2}, 4096, {vo}
    v_subrev_u32 {x0}, 3072, {vo}
    v_lshlrev_b32 {ti}, 4, v0
    s_lshl_b32 {sT1}, {sU}, 6
    s_waitcnt lgkmcnt(0)
    s_load_dwordx16 s[84:99], s[6:7], {sT1}
    s_load_dwordx4 s[80:83], s[48:49], {sT0}
    ''')
    for r in range(3): a(f'buffer_load_dwordx4 {Kr[4*r:4*r+4]}, {x0}, {S_A}, 0 offen offset:{1024*r}')
    for r in range(8):
        a(f'buffer_load_dwordx4 {Kr[12+4*r:16+4*r]}, {(vo, vo2)[r >> 2]}, {S_A}, 0 offen offset:{1024*(r & 3)}')
    for r in range(8):
        a(f'buffer_load_dwordx4 {Vr[4*r:4*r+4]}, {(vo, vo2)[r >> 2]}, {S_B}, 0 offen offset:{1024*(r & 3)}')
    Hr = P.alloc(40); vh = P.alloc(1)
    a(f'''s_lshl_b32 {sCh}, {sU}, 15
    s_lshl_b32 {sT0}, {sW}, 13
    s_add_u32 {sCh}, {sCh}, {sT0}
    v_add_u32 {vh}, {sCh}, {l16}
    v_subrev_u32 {x1}, 4, {vh}
    v_add_u32 {x0}, 4092, {vh}''')
    hq = lambda c, i: Hr[20*c + 4*i: 20*c + 4*i + 4]
    hp = lambda c, i: Hr[20*c + 16 + i]
    a(f's_mov_b32 {sT0}, 4096')
    for c in range(2):
        for i in range(4):
            a(f'buffer_load_dwordx4 {hq(c, i)}, {vh}, {S_W}, {(0, sT0)[c]} offen offset:{1024*i}')
            if c == 0 and i == 0: a(f'buffer_load_dword {hp(c, i)}, {x1}, {S_W}, 0 offen')
            elif c == 0: a(f'buffer_load_dword {hp(c, i)}, {vh}, {S_W}, 0 offen offset:{1024*i - 4}')
            else: a(f'buffer_load_dword {hp(c, i)}, {x0}, {S_W}, 0 offen offset:{1024*i}')
    a('s_waitcnt lgkmcnt(0)')
    for c in range(8):
        for j in range(4):
            src = 84 + 2*c + (j >> 1)
            a(f's_and_b32 s{48+4*c+j}, s{src}, 0xffff0000' if j & 1 else f's_lshl_b32 s{48+4*c+j}, s{src}, 16')
    for c in range(8):
        a(f's_and_b32 s{84+c}, s{80+(c>>1)}, 0xffff0000' if c & 1 else f's_lshl_b32 s{84+c}, s{80+(c>>1)}, 16')
    kf = P.alloc(11); vf = P.alloc(8)
    def unpack(dst, src, hi): a(f'v_and_b32 {dst}, 0xffff0000, {src}' if hi else f'v_lshlrev_b32 {dst}, 16, {src}')
    for c in range(8):
        for r in range(11): unpack(kf[r], Kr[4*r + (c >> 1)], c & 1)
        for r in range(8): unpack(vf[r], Vr[4*r + (c >> 1)], c & 1)
        for r in range(8):
            a(f'v_mul_f32 {kf[r]}, s{48+4*c+3}, {kf[r]}')
            for j in (2, 1, 0): a(f'v_fmac_f32 {kf[r]}, s{48+4*c+j}, {kf[r+3-j]}')
            a(f'v_mul_f32 {vf[r]}, {vf[r]}, {kf[r]}')
        for e in range(4): a(f'v_cvt_pk_bf16_f32 {U[4*c+e]}, {vf[7-2*e]}, {vf[6-2*e]}')
        a(f'ds_write_b128 {ti}, {U[4*c:4*c+4]} offset:{4096*c}')
    for r in range(8):
        a(f'buffer_load_dwordx4 {Vr[4*r:4*r+4]}, {(vo, vo2)[r >> 2]}, {S_X}, 0 offen offset:{1024*(r & 3)}')
    L_H, HC = 0x8000, 4096 + 128 + 64
    hw, Z = P.alloc(1), P.alloc(4)
    a(f's_mul_i32 {sT0}, {sW}, {4*HC}\n s_add_u32 {sT0}, {sT0}, {L_H}\n v_add_u32 {hw}, {sT0}, {l16}')
    a(f'v_mov_b64 {Z[0:2]}, 0\n v_mov_b64 {Z[2:4]}, 0')
    a('s_mov_b64 exec, 0xff')
    for n in range(4): a(f'ds_write_b128 {hw}, {Z} offset:{n*HC}')
    a('s_mov_b64 exec, 1')
    for c in range(2): a(f'v_mov_b32 {hp(c, 0)}, 0')
    a('s_mov_b64 exec, -1')
    for c in range(2):
        for i in range(4):
            h_ = hq(c, i)
            a(f'ds_write_b128 {hw}, {h_} offset:{2*c*HC + 128 + 1024*i}')
            a(f'v_alignbit_b32 {Z[0]}, {h_[0]}, {hp(c, i)}, 16')
            for e in range(1, 4): a(f'v_alignbit_b32 {Z[e]}, {h_[e]}, {h_[e-1]}, 16')
            a(f'ds_write_b128 {hw}, {Z} offset:{(2*c+1)*HC + 128 + 1024*i}')
    P.release(Hr); P.release(Kr); P.release(kf); P.release(vf)
    fa, ua, yw, msk = [P.alloc(1) for _ in range(4)]
    a(f'''
    v_and_b32 {x0}, 31, v0
    v_bfe_u32 {x1}, v0, 5, 1
    v_lshlrev_b32 {ua}, 7, {x0}
    v_lshl_add_u32 {yw}, {x1}, 3, {ua}
    v_lshl_add_u32 {ua}, {x1}, 4, {ua}
    s_lshl_b32 {sT1}, {sW}, 13
    v_add_u32 {ua}, {sT1}, {ua}
    v_add_u32 {yw}, {sT1}, {yw}
    v_cmp_eq_u32 vcc, 0, {x0}
    v_cndmask_b32 {msk}, -1, 0, vcc
    v_lshlrev_b32 {x1}, 3, {x1}
    v_sub_u32 {x1}, {x0}, {x1}
    v_add_u32 {x1}, 10, {x1}
    v_lshrrev_b32 {x1}, 1, {x1}
    v_lshlrev_b32 {fa}, 2, {x1}
    v_add_u32 {fa}, {sT0}, {fa}
    v_and_b32 {x0}, 1, {x0}
    v_sub_u32 {x0}, 1, {x0}
    v_mul_u32_u24 {x0}, {HC}, {x0}
    v_add_u32 {fa}, {fa}, {x0}
    s_mov_b32 {sT1}, 0
    s_waitcnt lgkmcnt(0)
    s_barrier
    ''')
    Bf = [P.alloc(16), P.alloc(16)]; Y = [P.alloc(16), P.alloc(16)]; F = P.alloc(48); fp = P.alloc(1)
    a.label('L_ssm_ch')
    keepvm = list(a.vm)
    a.lgkm = []
    fr = lambda n: F[4*((n + 3) % 12): 4*((n + 3) % 12) + 4]
    st = {'base': 0}
    def fload(n):
        off = (n + 3) * 8 - st['base']
        if off > 248:
            a(f'v_add_u32 {fp}, 1024, {fp}'); st['base'] += 256; off -= 256
        a(f'ds_read2_b32 {fr(n)[0:2]}, {fp} offset0:{off} offset1:{off+1}')
        a(f'ds_read2_b32 {fr(n)[2:4]}, {fp} offset0:{off+2} offset1:{off+3}')
    a(f'v_mov_b32 {fp}, {fa}')
    for ks in range(4): a(f'ds_read_b128 {Bf[0][4*ks:4*ks+4]}, {ua} offset:{32*ks}')
    for n in range(-3, 3): fload(n)
    for D in range(32):
        cur, nxt = Bf[D & 1], Bf[(D + 1) & 1]
        for ks in (3, 2, 1, 0):
            for rt in range(2):
                a(f'v_mfma_f32_32x32x16_bf16 {Y[rt]}, {fr(4*D + 2*rt - ks)}, {cur[4*ks:4*ks+4]}, {Y[rt] if (D or ks != 3) else 0}')
                if D < 31:
                    if rt == 0: fload(4*D + 3 + (3 - ks))
                    for e in range(2):
                        r = 4*ks + 2*rt + e
                        a(f'v_and_b32_dpp {nxt[r]}, {cur[r]}, {msk} wave_shr:1 row_mask:0xf bank_mask:0xf bound_ctrl:0')
    for rt in range(2):
        for q_ in range(4):
            y = Y[rt]
            a(f'v_cvt_pk_bf16_f32 {y[4*q_]}, {y[4*q_]}, {y[4*q_+1]}\n v_cvt_pk_bf16_f32 {y[4*q_+1]}, {y[4*q_+2]}, {y[4*q_+3]}')
            a(f'ds_write_b64 {yw}, {y[4*q_:4*q_+2]} offset:{64*rt + 16*q_}')
    a(f'''v_add_u32 {ua}, 4096, {ua}
    v_add_u32 {yw}, 4096, {yw}
    v_add_u32 {fa}, {2*HC}, {fa}
    s_add_u32 {sT1}, {sT1}, 1
    s_waitcnt lgkmcnt(0)
    s_cmp_lt_u32 {sT1}, 2
    s_cbranch_scc1 L_ssm_ch
    s_barrier''')
    a.vm = keepvm
    Yr = F[0:32]; ob = Bf[0]; tm = Bf[1]
    for c in range(8): a(f'ds_read_b128 {Yr[4*c:4*c+4]}, {ti} offset:{4096*c}')
    a(f's_mov_b32 {sT0}, {WS_B}')
    for r in range(8):
        o_ = ob[4*(r & 3):4*(r & 3)+4]
        for c in range(8):
            y_, u_, x_ = tm[c], tm[8 + (c & 1)*2], tm[9 + (c & 1)*2]
            unpack(y_, Yr[4*c + (r >> 1)], r & 1)
            unpack(u_, U[4*c + ((7 - r) >> 1)], (7 - r) & 1)
            unpack(x_, Vr[4*r + (c >> 1)], c & 1)
            a(f'v_fmac_f32 {y_}, s{84+c}, {u_}')
            a(f'v_mul_f32 {y_}, {y_}, {x_}')
        for e in range(4): a(f'v_cvt_pk_bf16_f32 {o_[e]}, {tm[2*e]}, {tm[2*e+1]}')
        a(f'buffer_store_dwordx4 {o_}, {(vo, vo2)[r >> 2]}, {S_WS}, {sT0} offen offset:{1024*(r & 3)} sc1')
    a(f'''s_waitcnt vmcnt(0)
    s_barrier
    s_cmp_lg_u32 {sW}, 0
    s_cbranch_scc1 L_op_start
    v_mov_b32 {x0}, 1
    s_mov_b64 exec, 1
    buffer_atomic_add {x0}, off, {S_DBG}, 0 offset:{D_SSM}
    s_mov_b64 exec, -1''')
    a.label('L_op_start')
    a.lgkm = []; a.vm = []
    P = Pool('v', 6, 256)
    srd(a, 12, KA_WO, 4096*1024); srd(a, 32, KA_GATE, 1024); srd(a, 36, KA_OUT, 2048*1024)
    ga, tr, xo, fo, rw = [P.alloc(1) for _ in range(5)]
    G = P.alloc(16); Xg = P.alloc(16); Bv = P.alloc(4); acc = P.alloc(20); Od = P.alloc(128); red = P.alloc(28)
    a(f'''
    v_lshrrev_b32 {x0}, 6, {l16}
    v_and_b32 {x1}, 0x30, {l16}
    v_lshl_add_u32 {ga}, {x0}, 10, {x1}
    s_and_b32 {sT0}, {sU}, 15
    s_lshl_b32 {sT0}, {sT0}, 6
    s_lshl_b32 {sT1}, {sW}, 20
    s_add_u32 {sCh}, {sT0}, {sT1}
    s_lshl_b32 {sT1}, {sW}, 15
    v_add_u32 {tr}, {sT1}, {l16}
    v_lshlrev_b32 {xo}, 4, {vg}
    v_lshlrev_b32 {fo}, 2, {l16}
    v_mov_b32 {x0}, 0x40000000
    v_cmp_gt_u32 vcc, 128, {l16}
    v_cndmask_b32 {fo}, {x0}, {fo}, vcc
    s_lshr_b32 {sSeg}, {sU}, 5
    s_bfe_u32 {sRow}, {sU}, 0x10004
    s_lshl_b32 {sOo}, {sSeg}, 1
    s_add_u32 {sRow}, {sRow}, {sOo}
    s_lshl_b32 {sOo}, {sRow}, 17
    s_add_u32 {sOo}, {sOo}, {sT1}
    s_add_u32 {sOo}, {sOo}, {WS_O}
    s_lshl_b32 {sRow}, {sRow}, 14
    s_lshl_b32 {sFO}, {sSeg}, 20
    s_lshl_b32 s48, {sW}, 9
    s_add_u32 {sFO}, {sFO}, s48
    s_add_u32 {sFO}, {sFO}, {WS_STEP + O_FO}
    s_lshl_b32 s48, {sW}, 8
    s_mov_b32 s49, {sT0}
    s_waitcnt lgkmcnt(0)
    ''')
    for i in range(4): a(f'buffer_load_dwordx4 {G[4*i:4*i+4]}, {xo}, {S_A}, s48 offen offset:{64*i}')
    a(f'v_lshl_add_u32 {xo}, {vj}, 10, {xo}')
    for bt in range(2):
        a(f's_mov_b32 m0, {sT1}')
        for i in range(32):
            a(f'buffer_load_dwordx4 {ga}, {S_W}, {sCh} offen lds')
            a(f's_add_u32 {sCh}, {sCh}, 16384\n s_add_u32 m0, m0, 1024')
        for bl in range(16):
            if bl % 4 == 0: a(f's_waitcnt vmcnt({24 - 2*bl})')
            for ct in range(2):
                for hf in range(2):
                    r0 = (bt*16 + bl)*8 + ct*4 + hf*2
                    a(f'ds_read_b64_tr_b16 a[{r0}:{r0+1}], {tr} offset:{bl*2048 + hf*1024 + ct*8}')
        a('s_waitcnt lgkmcnt(0)')
    a.vm = []
    wait_word(a, 'L_op_rdy', D_READY, 32, x0)
    wait_word(a, 'L_op_ssm', D_SSM, 64, x0)
    a(f's_mul_i32 {sT1}, {sW}, 3072\n v_add_u32 {rw}, {sT1}, {l16}\n s_barrier')
    a.label('L_op_loop')
    a.lgkm = []; a.vm = []
    a(f's_add_u32 {sT0}, {sRow}, s48')
    for i in range(4): a(f'buffer_load_dwordx4 {Xg[4*i:4*i+4]}, {xo}, {S_X}, {sT0} offen offset:{64*i}')
    a(f's_add_u32 s50, {sRow}, s49\n s_add_u32 {sT0}, s50, {WS_B}')
    a(f'buffer_load_dwordx4 {Bv}, {xo}, {S_WS}, {sT0} offen sc1')
    for i in range(4): a(f'v_mfma_f32_16x16x32_bf16 {acc[16:20]}, {G[4*i:4*i+4]}, {Xg[4*i:4*i+4]}, {acc[16:20] if i else 0}')
    a.label('L_op_poll')
    a(f'buffer_load_dword {x0}, {fo}, {S_WS}, {sFO} offen sc1')
    retry(a)
    a(f's_waitcnt vmcnt(0)\n v_cmp_eq_u32 vcc, -1, {x0}\n s_cbranch_vccz L_op_got\n s_sleep 1\n s_branch L_op_poll')
    a.label('L_op_got')
    a(f's_mov_b32 {sT0}, {sOo}')
    for bl in range(32):
        a(f'buffer_load_dwordx4 {Od[4*bl:4*bl+4]}, {l16}, {S_WS}, {sT0} offen offset:{1024*(bl & 3)} sc1')
        if bl & 3 == 3 and bl < 31: a(f's_add_u32 {sT0}, {sT0}, 4096')
    for bl in range(32):
        for ct in range(2):
            d = acc[8*(bl & 1) + 4*ct: 8*(bl & 1) + 4*ct + 4]
            a(f'v_mfma_f32_16x16x32_bf16 {d}, a[{bl*8+ct*4}:{bl*8+ct*4+3}], {Od[4*bl:4*bl+4]}, {d if bl > 1 else 0}')
    for i in range(8): a(f'v_add_f32 {acc[i]}, {acc[i]}, {acc[8+i]}')
    a(f'''s_cmp_eq_u32 {sW}, 0
    s_cbranch_scc1 L_op_w0
    ds_write_b128 {rw}, {acc[0:4]}
    ds_write_b128 {rw}, {acc[4:8]} offset:1024
    ds_write_b32 {rw}, {acc[16]} offset:2048
    s_waitcnt lgkmcnt(0)
    s_barrier
    s_branch L_op_next''')
    a.label('L_op_w0')
    a('s_barrier')
    for w_ in range(1, 4): a(f'ds_read_b32 {red[24+w_]}, {rw} offset:{3072*w_ + 2048}')
    for w_ in range(1, 4):
        for ct in range(2): a(f'ds_read_b128 {red[8*(w_-1)+4*ct:8*(w_-1)+4*ct+4]}, {rw} offset:{3072*w_ + 1024*ct}')
    g_ = acc[16]
    a(f'''v_add_f32 {g_}, {g_}, {red[25]}
    v_add_f32 {red[26]}, {red[26]}, {red[27]}
    v_add_f32 {g_}, {g_}, {red[26]}
    v_mul_f32 {g_}, 0xbfb8aa3b, {g_}
    v_exp_f32 {g_}, {g_}
    v_add_f32 {g_}, 1.0, {g_}
    v_rcp_f32 {g_}, {g_}''')
    a(f'v_sub_f32 {acc[17]}, 1.0, {g_}')
    for i in range(8):
        unpack(acc[8+i], Bv[i >> 1], i & 1)
        a(f'v_mul_f32 {acc[8+i]}, {acc[8+i]}, {acc[17]}')
    for i in range(8):
        a(f'v_add_f32 {acc[i]}, {acc[i]}, {red[i]}\n v_add_f32 {red[8+i]}, {red[8+i]}, {red[16+i]}\n v_add_f32 {acc[i]}, {acc[i]}, {red[8+i]}')
        a(f'v_fmac_f32 {acc[8+i]}, {acc[i]}, {g_}')
    for e in range(4): a(f'v_cvt_pk_bf16_f32 {red[e]}, {acc[8+2*e]}, {acc[9+2*e]}')
    a(f'buffer_store_dwordx4 {red[0:4]}, {xo}, {S_B}, s50 offen')
    a.label('L_op_next')
    a(f'''v_xor_b32 {rw}, 0x4000, {rw}
    s_add_u32 {sRow}, {sRow}, {3*32768}
    s_add_u32 {sOo}, {sOo}, {3*0x40000}
    s_add_u32 {sFO}, {sFO}, {3*STEP}
    s_add_u32 {sSeg}, {sSeg}, 3
    s_cmp_lt_u32 {sSeg}, 64
    s_cbranch_scc1 L_op_loop
    s_waitcnt vmcnt(0)
    s_endpgm''')
```

```python
import sys
sys.path.insert(0, 'gen')
from asmlib import *
from layout import *
import chain as C
import worker as WK
KNAME = 'gated_mix__memory_aug_recurrent_mem_tr__ssm_conv_h3__prompt_kernel'
import os
_ref = 'gated_mix__memory_aug_recurrent_mem_tr__ssm_conv_h3__prompt.s.ref'
HEADER = open(_ref).read().split('; @launch')[0] if os.path.exists(_ref) else ''

D_READY, D_MASK, D_OVF, D_WINIT, D_SSM = 4, 8, 160, 192, 196

def gen(opts):
    a = Asm()
    S_WS, S_DBG, sH, sW, sTO = C.S_WS, C.S_DBG, C.sH, C.sW, C.sTO
    a(f'''
    s_cmp_ge_u32 s2, 256
    s_cbranch_scc1 L_exit
    s_load_dwordx4 s[4:7], s[0:1], {KA_DBG}
    s_getreg_b32 s3, hwreg(HW_REG_XCC_ID)
    s_and_b32 s3, s3, 7
    v_lshrrev_b32 v1, 6, v0
    s_mov_b32 {sTO}, 0x400000
    v_readfirstlane_b32 {sW}, v1
    s_waitcnt lgkmcnt(0)
    s_mov_b32 s8, s6
    s_mov_b32 s9, s7
    s_mov_b32 s10, {WS_SIZE}
    s_mov_b32 s11, 0x20000
    s_mov_b32 s16, s4
    s_mov_b32 s17, s5
    s_mov_b32 s18, 256
    s_mov_b32 s19, 0x20000
    ''')
    if opts.get('stamps'):
        a('s_memrealtime s[76:77]\n s_mov_b32 s75, 0\n s_waitcnt lgkmcnt(0)')
    a(f'''
    s_cmp_lg_u32 {sW}, 0
    s_cbranch_scc1 L_el_wait
    s_lshl_b32 s4, s3, 2
    s_add_u32 s4, s4, 128
    s_cmp_eq_u32 s3, 0
    s_cselect_b32 s4, 0, s4
    v_mov_b32 v2, 1
    s_mov_b64 exec, 1
    buffer_atomic_add v2, off, {S_DBG}, s4 sc0
    s_waitcnt vmcnt(0)
    v_readfirstlane_b32 s5, v2
    s_cmp_lt_u32 s5, 32
    s_cbranch_scc0 L_el_overflow
    s_lshl_b32 s6, s3, 5
    s_add_u32 s5, s5, s6
    ''')
    a.label('L_el_have')
    a(f'''
    v_mov_b32 v2, s5
    v_mov_b32 v3, {C.L_MISC}
    ds_write_b32 v3, v2
    s_mov_b64 exec, -1
    s_waitcnt lgkmcnt(0)
    ''')
    a.label('L_el_wait')
    a(f'''
    s_barrier
    v_mov_b32 v3, {C.L_MISC}
    ds_read_b32 v2, v3
    s_waitcnt lgkmcnt(0)
    v_readfirstlane_b32 s5, v2
    s_cmp_lt_u32 s5, 32
    s_cbranch_scc1 L_chain
    ''')
    if opts.get('test_kv'): a('s_branch L_exit')
    else: a('s_cmp_lt_u32 s5, 160\n s_cbranch_scc1 L_attn\n s_branch L_outp')
    a.label('L_el_overflow')
    a(f'''
    v_mov_b32 v2, 1
    buffer_atomic_add v2, off, {S_DBG}, 0 offset:{D_OVF} sc0
    s_waitcnt vmcnt(0)
    v_readfirstlane_b32 s6, v2
    ''')
    a.label('L_el_spin')
    a(f'''
    buffer_load_dword v4, off, {S_DBG}, 0 sc1
    buffer_load_dwordx4 v[8:11], off, {S_DBG}, 0 offset:128 sc1
    buffer_load_dwordx4 v[12:15], off, {S_DBG}, 0 offset:144 sc1
    s_sub_u32 {sTO}, {sTO}, 1
    s_cbranch_scc1 L_exit
    s_waitcnt vmcnt(0)
    v_mov_b32 v8, v4
    v_add3_u32 v5, v8, v9, v10
    v_add3_u32 v5, v5, v11, v12
    v_add3_u32 v5, v5, v13, v14
    v_add_u32 v5, v5, v15
    v_readfirstlane_b32 s7, v5
    s_cmp_lt_u32 s7, 256
    s_cbranch_scc1 L_el_spin
    ''')
    for x in range(8):
        a(f'''
        v_readfirstlane_b32 s7, v{8+x}
        s_min_u32 s7, s7, 32
        s_add_u32 s5, s7, s6
        s_sub_u32 s6, s5, 32
        s_cmp_lt_u32 s5, 32
        s_addk_i32 s5, 0
        ''' if False else f'''
        v_readfirstlane_b32 s7, v{8+x}
        s_min_u32 s7, s7, 32
        s_add_u32 s7, s7, s6
        s_add_u32 s5, s7, {32*x}
        s_sub_u32 s6, s7, 32
        s_cmp_lt_u32 s7, 32
        s_cbranch_scc1 L_el_have
        ''')
    a('s_branch L_exit')

    a.label('L_exit')
    a('s_endpgm')
    if not opts.get('test_kv'):
        WK.attn(a, opts)
        WK.outp(a, opts)
    a.label('L_chain')
    a(f's_mov_b32 {sH}, s5')
    for w in range(1, 4):
        a(f's_cmp_eq_u32 {sW}, {w}\n s_cbranch_scc1 L_chain_w{w}')
    ch = C.Chain(a, opts)
    for w in range(4):
        a.label(f'L_chain_w{w}')
        a.lgkm = []; a.vm = []
        ch.plan(w)
        ch.init_buffers(w)
        a('s_waitcnt vmcnt(0)\n s_barrier')
        if w == 0:
            a(f'''
            s_lshl_b32 s4, 1, s3
            v_mov_b32 v2, s4
            v_mov_b32 v3, 1
            s_mov_b64 exec, 1
            buffer_atomic_or v2, off, {S_DBG}, 0 offset:{D_MASK}
            s_waitcnt vmcnt(0)
            buffer_atomic_add v3, off, {S_DBG}, 0 offset:{D_READY}
            s_waitcnt vmcnt(0)
            s_mov_b64 exec, -1
            ''')
        ch.loader(w)
        ch.setup(w)
        R = ch.R
        a.label(f'L_chain_rdy{w}')
        a(f'''
        buffer_load_dwordx2 {R['tD'][0:2]}, off, {S_DBG}, 0 offset:{D_READY} sc1
        s_sub_u32 {sTO}, {sTO}, 1
        s_cbranch_scc1 L_exit
        s_waitcnt vmcnt(0)
        v_readfirstlane_b32 s4, {R['tD'][0]}
        v_readfirstlane_b32 s5, {R['tD'][1]}
        s_cmp_lt_u32 s4, 32
        s_cbranch_scc1 L_chain_rdy{w}
        ''')
        if opts.get('stamps'):
            a(f'''s_memrealtime s[78:79]
            s_waitcnt lgkmcnt(0)
            s_lshl_b32 s4, {sH}, 8
            s_add_u32 s4, s4, {WS_DBG + w*64}
            v_mov_b32 {R['x0']}, s76
            v_mov_b32 {R['x1']}, s78
            buffer_store_dword {R['x0']}, off, {S_WS}, s4 offset:48
            buffer_store_dword {R['x1']}, off, {S_WS}, s4 offset:52
            ''')
        a(f's_bcnt1_i32_b32 s5, s5\n s_cmp_eq_u32 s5, {1 if not opts.get("force_slow") else 0}\n s_cbranch_scc0 L_chain_slow{w}')
        ch.loop(w, '', f'LF{w}')
        a.label(f'L_chain_slow{w}')
        a.lgkm = []; a.vm = []
        ch.loop(w, 'sc1', f'LS{w}')
    body = a.text()
    return HEADER + f"""; @launch grid=(256,1,1) block=(256,1,1) lds=163840
.amdgcn_target "amdgcn-amd-amdhsa--gfx950"
.text
.globl {KNAME}
.p2align 8
.type {KNAME},@function
{KNAME}:
{body}    s_endpgm
.section .rodata,"a"
.p2align 6
.amdhsa_kernel {KNAME}
  .amdhsa_next_free_vgpr 512
  .amdhsa_next_free_sgpr 102
  .amdhsa_accum_offset 256
  .amdhsa_group_segment_fixed_size 0
  .amdhsa_kernarg_size 136
  .amdhsa_user_sgpr_count 2
  .amdhsa_user_sgpr_kernarg_segment_ptr 1
  .amdhsa_system_sgpr_workgroup_id_x 1
.end_amdhsa_kernel
"""
if __name__ == '__main__':
    opts = {}
    for x in sys.argv[2:]:
        k, _, v = x.partition('=')
        opts[k] = eval(v) if v else True
    open(sys.argv[1], 'w').write(gen(opts))
```
